```python
import torch

def _softmax(x, axis=-1):
    return torch.softmax(x, dim=axis)
def _gelu(x):
    return torch.nn.functional.gelu(x, approximate="tanh")
def _silu(x):
    return torch.nn.functional.silu(x)
def _sigmoid(x):
    return torch.sigmoid(x)
def _layernorm(x, axis=-1, eps=1e-5):
    m = x.mean(dim=axis, keepdim=True)
    v = x.var(dim=axis, keepdim=True, unbiased=False)
    return (x - m) / torch.sqrt(v + eps)
def _scatter_add(tgt, idx, src, axis=0):
    return tgt.clone().index_add_(axis, idx, src)
def _segment_sum(src, seg, n):
    out = torch.zeros((n,) + src.shape[1:], dtype=src.dtype)
    return out.index_add_(0, seg, src)
def _pad(x, pw):
    flat = tuple(v for pair in reversed(pw) for v in pair)
    return torch.nn.functional.pad(x, flat)

kernel_name = 'sequential_preLN__linear_attn_block__glu_gated_bilinear__prompt'

def setup_inputs():

    _w = (lambda a: (lambda t: t.to(torch.bfloat16) if t.is_floating_point() else t)(torch.as_tensor(a)))
    def _A_setup():
        B, S, D = 1, 2048, 512
        return {
            "x": _w((lambda *s: torch.randn(*s, dtype=torch.bfloat16) * 0.05)(B, S, D)),
            "wqkv": _w((lambda *s: torch.randn(*s, dtype=torch.bfloat16) * 0.05)(D, 3 * D)),
            "wo": _w((lambda *s: torch.randn(*s, dtype=torch.bfloat16) * 0.05)(D, D)),
        }
    _A_in = _A_setup()

    def _B_setup():
        B, S, D, F = 1, 2048, 512, 1376
        return {
            "x": _w((lambda *s: torch.randn(*s, dtype=torch.bfloat16) * 0.05)(B, S, D)),
            "w_gate": _w((lambda *s: torch.randn(*s, dtype=torch.bfloat16) * 0.2)(D, F) * (D ** -0.5)),
            "w_up": _w((lambda *s: torch.randn(*s, dtype=torch.bfloat16) * 0.2)(D, F) * (D ** -0.5)),
            "w_down": _w((lambda *s: torch.randn(*s, dtype=torch.bfloat16) * 0.2)(F, D) * (F ** -0.5)),
        }
    _B_in = _B_setup()

    return {
        "A_x": _A_in["x"],
        "A_wqkv": _A_in["wqkv"],
        "A_wo": _A_in["wo"],
        "B_x": _B_in["x"],
        "B_w_gate": _B_in["w_gate"],
        "B_w_up": _B_in["w_up"],
        "B_w_down": _B_in["w_down"],
    }

def reference(A_x, A_wqkv, A_wo, B_x, B_w_gate, B_w_up, B_w_down):
    def _A_ref(x, wqkv, wo):
        B, S, D = x.shape
        H = 32; Dh = D // H
        qkv = (lambda x, *d: x.permute(*d))((x @ wqkv).reshape(B, S, 3, H, Dh), 2, 0, 3, 1, 4)
        q, k, v = qkv[0], qkv[1], qkv[2]
        phi = lambda t: torch.where(t > 0, t + 1, torch.exp(t)) + 1e-6
        pq, pk = phi(q), phi(k)
        kv = torch.einsum("bhsd,bhse->bhde", pk, v)
        z = torch.einsum("bhsd->bhd", pk)
        num = torch.einsum("bhqd,bhde->bhqe", pq, kv)
        den = torch.einsum("bhqd,bhd->bhq", pq, z)[..., None] + 1e-6
        o = num / den
        return (lambda x, *d: x.permute(*d))(o, 0, 2, 1, 3).reshape(B, S, D) @ wo

    def _B_ref(x, w_gate, w_up, w_down):
        g = torch.einsum("bsd,df->bsf", x, w_gate)
        u = torch.einsum("bsd,df->bsf", x, w_up)
        h = g * u
        return torch.einsum("bsf,fd->bsd", h, w_down)

    x = A_x
    h = x + _A_ref(_layernorm(x, axis=-1), A_wqkv, A_wo)
    h2 = h + _B_ref(_layernorm(h, axis=-1), B_w_gate, B_w_up, B_w_down)
    return h2
```

```python
import sys

NAME = "sequential_preLN__linear_attn_block__glu_gated_bilinear__prompt"
S, D, F = 2048, 512, 1376
WS_PQ = 0x000000
WS_PART = 0x200000
WS_KVZ = 0x300000
WS_H = 0x400000
WS_HH = 0x600000
WS_END = 0x600000 + S * F * 2

out = []


def e(s=""):
    out.append("    " + s if s and not s.endswith(":") else s)


def c(s):
    out.append("    ; " + s)


def srd(base, ptr, size, off=0):
    if off:
        e(f"s_add_u32 s{base}, s{ptr}, 0x{off:x}")
        e(f"s_addc_u32 s{base+1}, s{ptr+1}, 0")
    else:
        e(f"s_mov_b32 s{base}, s{ptr}")
        e(f"s_mov_b32 s{base+1}, s{ptr+1}")
    e(f"s_mov_b32 s{base+2}, 0x{size:x}")
    e(f"s_mov_b32 s{base+3}, 0x00020000")


def kernel_begin(name):
    out.append(".p2align 8")
    out.append(f".globl {name}")
    out.append(f".type {name},@function")
    out.append(f"{name}:")


def kdesc(name, vgpr, accum, sgpr=96):
    out.append(f".amdhsa_kernel {name}")
    out.append(f"  .amdhsa_next_free_vgpr {vgpr}")
    out.append(f"  .amdhsa_next_free_sgpr {sgpr}")
    out.append(f"  .amdhsa_accum_offset {accum}")
    out.append("  .amdhsa_group_segment_fixed_size 0")
    out.append("  .amdhsa_kernarg_size 80")
    out.append("  .amdhsa_user_sgpr_count 2")
    out.append("  .amdhsa_user_sgpr_kernarg_segment_ptr 1")
    out.append("  .amdhsa_system_sgpr_workgroup_id_x 1")
    out.append(".end_amdhsa_kernel")


def common_ids():
    e("v_and_b32 v1, 63, v0")
    e("v_lshrrev_b32 v4, 6, v0")
    e("s_nop 0")
    e("v_readfirstlane_b32 s24, v4")
    e("v_and_b32 v2, 31, v1")
    e("v_lshrrev_b32 v3, 5, v1")


def tr_base(dst, kperm):
    e("v_bfe_u32 v5, v1, 2, 2")
    e("v_and_b32 v6, 3, v1")
    e("v_bfe_u32 v7, v1, 4, 1")
    e(f"v_lshlrev_b32 v{dst}, {2 if kperm else 3}, v3")
    e(f"v_add_u32 v{dst}, v{dst}, v5")
    e(f"v_lshlrev_b32 v{dst}, 6, v{dst}")
    e(f"v_lshl_add_u32 v{dst}, v7, 5, v{dst}")
    e(f"v_lshl_add_u32 v{dst}, v6, 3, v{dst}")


def ln_stats(A, rs, nb, t0):
    s0, s1, q0, q1, ones = t0, t0 + 1, t0 + 2, t0 + 3, t0 + 4
    e(f"v_mov_b32 v{ones}, 0x3f803f80")
    for r in (s0, s1, q0, q1):
        e(f"v_mov_b32 v{r}, 0")
    for i in range(128):
        e(f"v_dot2c_f32_bf16 v{s0 if i % 2 == 0 else s1}, v{A+i}, v{ones}")
        e(f"v_dot2c_f32_bf16 v{q0 if i % 2 == 0 else q1}, v{A+i}, v{A+i}")
    e("s_nop 3")
    e(f"v_add_f32 v{s0}, v{s0}, v{s1}")
    e(f"v_add_f32 v{q0}, v{q0}, v{q1}")
    e(f"v_mov_b32 v{s1}, v{s0}")
    e(f"v_mov_b32 v{q1}, v{q0}")
    e("s_nop 1")
    e(f"v_permlane32_swap_b32 v{s0}, v{s1}")
    e(f"v_permlane32_swap_b32 v{q0}, v{q1}")
    e("s_nop 1")
    e(f"v_add_f32 v{s0}, v{s0}, v{s1}")
    e(f"v_add_f32 v{q0}, v{q0}, v{q1}")
    e(f"v_mul_f32 v{s0}, 0x3b000000, v{s0}")
    e(f"v_mul_f32 v{q0}, 0x3b000000, v{q0}")
    e(f"v_fma_f32 v{q0}, -v{s0}, v{s0}, v{q0}")
    e(f"v_max_f32 v{q0}, 0, v{q0}")
    e(f"v_add_f32 v{q0}, 0x3727c5ac, v{q0}")
    e(f"v_rsq_f32 v{rs}, v{q0}")
    e("s_nop 0")
    e(f"v_mul_f32 v{nb}, v{s0}, v{rs}")
    e(f"v_sub_f32 v{nb}, 0, v{nb}")


def ln_apply_ops(reg, rs, nb, t0):
    lo, hi = t0, t0 + 1
    return [
        f"v_lshlrev_b32 v{lo}, 16, v{reg}",
        f"v_and_b32 v{hi}, 0xffff0000, v{reg}",
        f"v_fma_f32 v{lo}, v{lo}, v{rs}, v{nb}",
        f"v_fma_f32 v{hi}, v{hi}, v{rs}, v{nb}",
        f"v_cvt_pk_bf16_f32 v{reg}, v{lo}, v{hi}",
    ]


def phi_ops(regs, tmp):
    n = len(regs)
    for i, r in enumerate(regs):
        e(f"v_mul_f32 v{tmp+i}, 0x3fb8aa3b, v{r}")
    for i, r in enumerate(regs):
        e(f"v_min_f32 v{tmp+i}, 0, v{tmp+i}")
    for i, r in enumerate(regs):
        e(f"v_exp_f32 v{tmp+i}, v{tmp+i}")
    for i, r in enumerate(regs):
        e(f"v_max_f32 v{r}, 0, v{r}")
    for i, r in enumerate(regs):
        e(f"v_add_f32 v{tmp+i}, 0x358637bd, v{tmp+i}")
    for i, r in enumerate(regs):
        e(f"v_add_f32 v{r}, v{r}, v{tmp+i}")


def interleave(main, fill):
    n = len(main)
    k = 0
    for i, m in enumerate(main):
        e(m)
        tgt = (len(fill) * (i + 1)) // n
        while k < tgt:
            e(fill[k])
            k += 1


def k1():
    name = "k1_qkv_kernel"
    kernel_begin(name)
    e("s_cmp_ge_u32 s2, 256")
    e("s_cbranch_scc1 K1_END")
    e("s_load_dwordx2 s[4:5], s[0:1], 0")
    e("s_load_dwordx2 s[6:7], s[0:1], 8")
    e("s_load_dwordx2 s[8:9], s[0:1], 72")
    common_ids()
    e("s_lshr_b32 s25, s2, 4")
    e("s_and_b32 s26, s2, 15")
    e("s_waitcnt lgkmcnt(0)")
    srd(12, 4, S * D * 2)
    srd(16, 6, D * 3 * D * 2)
    srd(20, 8, WS_END)
    A = 16
    ACQ, ACK, ACV = 144, 160, 176
    BF = [192, 204]
    T = 216
    e("s_lshl_b32 s27, s25, 7")
    e("s_lshl_b32 s28, s24, 5")
    e("s_add_u32 s27, s27, s28")
    e("v_add_u32 v8, s27, v2")
    e("v_lshlrev_b32 v9, 10, v8")
    e("v_lshl_add_u32 v9, v3, 4, v9")
    for j in range(32):
        e(f"buffer_load_dwordx4 v[{A+4*j}:{A+4*j+3}], v9, s[12:15], 0 offen offset:{32*j}")
    e("v_lshrrev_b32 v10, 2, v1")
    e("s_lshl_b32 s28, s24, 7")
    e("v_add_u32 v10, s28, v10")
    e("s_movk_i32 s29, 3072")
    e("v_mul_lo_u32 v10, v10, s29")
    e("v_and_b32 v11, 3, v1")
    e("v_lshl_add_u32 v10, v11, 4, v10")
    e("s_lshl_b32 s29, s26, 6")
    e("v_add_u32 v10, s29, v10")
    e("s_lshl_b32 s30, s24, 13")
    for p in range(3):
        for i in range(8):
            e(f"s_mov_b32 s31, {p*1024 + i*49152}")
            e(f"s_add_u32 m0, s30, {p*32768 + i*1024}")
            e("s_nop 0")
            e("buffer_load_dwordx4 v10, s[16:19], s31 offen lds")
    tr_base(12, False)
    e("v_add_u32 v13, 0x10000, v12")
    e("s_waitcnt vmcnt(24)")
    RS, NB = 14, 15
    ln_stats(A, RS, NB, T)
    for r in range(4):
        for op in ln_apply_ops(A + r, RS, NB, T):
            e(op)
    e("s_waitcnt vmcnt(0)")
    e("s_barrier")

    def reads(j, buf):
        b = BF[buf]
        e(f"ds_read_b64_tr_b16 v[{b}:{b+1}], v12 offset:{j*1024}")
        e(f"ds_read_b64_tr_b16 v[{b+2}:{b+3}], v12 offset:{j*1024+256}")
        e(f"ds_read_b64_tr_b16 v[{b+4}:{b+5}], v12 offset:{32768+j*1024}")
        e(f"ds_read_b64_tr_b16 v[{b+6}:{b+7}], v12 offset:{32768+j*1024+256}")
        e(f"ds_read_b64_tr_b16 v[{b+8}:{b+9}], v13 offset:{j*1024}")
        e(f"ds_read_b64_tr_b16 v[{b+10}:{b+11}], v13 offset:{j*1024+256}")

    reads(0, 0)
    for j in range(32):
        b = BF[j & 1]
        if j + 1 < 32:
            reads(j + 1, (j + 1) & 1)
            e("s_waitcnt lgkmcnt(6)")
        else:
            e("s_waitcnt lgkmcnt(0)")
        a = f"v[{A+4*j}:{A+4*j+3}]"
        cq = "0" if j == 0 else f"v[{ACQ}:{ACQ+15}]"
        ck = "0" if j == 0 else f"v[{ACK}:{ACK+15}]"
        cv = "0" if j == 0 else f"v[{ACV}:{ACV+15}]"
        main = [
            f"v_mfma_f32_32x32x16_bf16 v[{ACQ}:{ACQ+15}], v[{b}:{b+3}], {a}, {cq}",
            f"v_mfma_f32_32x32x16_bf16 v[{ACK}:{ACK+15}], {a}, v[{b+4}:{b+7}], {ck}",
            f"v_mfma_f32_32x32x16_bf16 v[{ACV}:{ACV+15}], {a}, v[{b+8}:{b+11}], {cv}",
        ]
        fill = []
        if j + 1 < 32:
            for r in range(4):
                fill += ln_apply_ops(A + 4 * (j + 1) + r, RS, NB, T + 2 * (r & 1))
        interleave(main, fill)
    e("s_nop 7")
    e("s_nop 7")
    phi_ops([ACQ + i for i in range(16)], T)
    e("v_lshlrev_b32 v9, 10, v8")
    e("v_lshl_add_u32 v9, v3, 3, v9")
    e("s_lshl_b32 s29, s26, 6")
    e("v_add_u32 v9, s29, v9")
    for q in range(4):
        e(f"v_cvt_pk_bf16_f32 v{T+2*q}, v{ACQ+4*q}, v{ACQ+4*q+1}")
        e(f"v_cvt_pk_bf16_f32 v{T+2*q+1}, v{ACQ+4*q+2}, v{ACQ+4*q+3}")
    for q in range(4):
        e(f"buffer_store_dwordx2 v[{T+2*q}:{T+2*q+1}], v9, s[20:23], 0 offen offset:{WS_PQ + 16*q}")
    phi_ops([ACK + i for i in range(16)], T + 8)
    PK, VV, ON = A, A + 8, A + 16
    for m in range(8):
        e(f"v_cvt_pk_bf16_f32 v{PK+m}, v{ACK+2*m}, v{ACK+2*m+1}")
        e(f"v_cvt_pk_bf16_f32 v{VV+m}, v{ACV+2*m}, v{ACV+2*m+1}")
    for m in range(4):
        e(f"v_mov_b32 v{ON+m}, 0x3f803f80")
    e("s_nop 1")
    DKV, DZ = ACQ, ACK
    e(f"v_mfma_f32_32x32x16_bf16 v[{DKV}:{DKV+15}], v[{PK}:{PK+3}], v[{VV}:{VV+3}], 0")
    e(f"v_mfma_f32_32x32x16_bf16 v[{DZ}:{DZ+15}], v[{PK}:{PK+3}], v[{ON}:{ON+3}], 0")
    e(f"v_mfma_f32_32x32x16_bf16 v[{DKV}:{DKV+15}], v[{PK+4}:{PK+7}], v[{VV+4}:{VV+7}], v[{DKV}:{DKV+15}]")
    e(f"v_mfma_f32_32x32x16_bf16 v[{DZ}:{DZ+15}], v[{PK+4}:{PK+7}], v[{ON}:{ON+3}], v[{DZ}:{DZ+15}]")
    e("s_barrier")
    e("s_mul_i32 s29, s24, 2304")
    e("v_and_b32 v5, 15, v1")
    e("v_lshlrev_b32 v5, 2, v5")
    e("v_lshl_add_u32 v5, v7, 10, v5")
    e("v_lshl_add_u32 v5, v3, 8, v5")
    e("v_add_u32 v5, s29, v5")
    e("v_cmp_ne_u32 vcc, 0, v7")
    e("s_nop 7")
    e("s_nop 7")
    for m in range(8):
        e(f"v_cndmask_b32 v{T+m}, v{DKV+m}, v{DKV+8+m}, vcc")
    for m in range(8):
        e(f"ds_write_b32 v5, v{T+m} offset:{(m&3)*64 + (m>>2)*512}")
    e("v_lshlrev_b32 v6, 4, v3")
    e("v_add_u32 v6, s29, v6")
    e("v_add_u32 v6, 2048, v6")
    e("s_mov_b32 s40, 1")
    e("s_mov_b32 s41, 1")
    e("s_mov_b64 exec, s[40:41]")
    for r in range(16):
        e(f"ds_write_b32 v6, v{DZ+r} offset:{(r&3)*4 + (r>>2)*32}")
    e("s_mov_b64 exec, -1")
    e("s_waitcnt lgkmcnt(0)")
    e("s_barrier")
    e("v_lshlrev_b32 v5, 2, v0")
    for w in range(4):
        e(f"ds_read_b32 v{T+w}, v5 offset:{w*2304}")
        e(f"ds_read_b32 v{T+4+w}, v5 offset:{w*2304+1024}")
    e("v_cmp_gt_u32 vcc, 32, v0")
    e("s_and_saveexec_b64 s[40:41], vcc")
    for w in range(4):
        e(f"ds_read_b32 v{T+8+w}, v5 offset:{w*2304+2048}")
    e("s_mov_b64 exec, s[40:41]")
    e("s_lshl_b32 s29, s25, 5")
    e("s_lshl_b32 s30, s26, 1")
    e("s_add_u32 s29, s29, s30")
    e("s_mul_i32 s29, s29, 1088")
    e(f"s_add_u32 s29, s29, 0x{WS_PART:x}")
    e("v_add_u32 v6, s29, v5")
    e("s_waitcnt lgkmcnt(0)")
    e(f"v_add_f32 v{T}, v{T}, v{T+1}")
    e(f"v_add_f32 v{T+2}, v{T+2}, v{T+3}")
    e(f"v_add_f32 v{T+4}, v{T+4}, v{T+5}")
    e(f"v_add_f32 v{T+6}, v{T+6}, v{T+7}")
    e(f"v_add_f32 v{T}, v{T}, v{T+2}")
    e(f"v_add_f32 v{T+4}, v{T+4}, v{T+6}")
    e(f"buffer_store_dword v{T}, v6, s[20:23], 0 offen")
    e(f"buffer_store_dword v{T+4}, v6, s[20:23], 0 offen offset:1088")
    e("v_cmp_gt_u32 vcc, 32, v0")
    e("s_and_saveexec_b64 s[40:41], vcc")
    e("s_cbranch_execz K1_END")
    e(f"v_add_f32 v{T+8}, v{T+8}, v{T+9}")
    e(f"v_add_f32 v{T+10}, v{T+10}, v{T+11}")
    e(f"v_add_f32 v{T+8}, v{T+8}, v{T+10}")
    e("v_lshrrev_b32 v6, 4, v0")
    e("v_mul_u32_u24 v6, 1088, v6")
    e("v_and_b32 v7, 15, v0")
    e("v_lshl_add_u32 v6, v7, 2, v6")
    e("v_add_u32 v6, s29, v6")
    e(f"buffer_store_dword v{T+8}, v6, s[20:23], 0 offen offset:1024")
    out.append("K1_END:")
    e("s_endpgm")
    return name


def kr():
    name = "kr_reduce_kernel"
    kernel_begin(name)
    e("s_cmp_ge_u32 s2, 32")
    e("s_cbranch_scc1 KR_END")
    e("s_load_dwordx2 s[8:9], s[0:1], 72")
    e("s_waitcnt lgkmcnt(0)")
    srd(20, 8, WS_END)
    e("s_mul_i32 s25, s2, 1088")
    e(f"s_add_u32 s25, s25, 0x{WS_PART:x}")
    e("v_lshlrev_b32 v1, 2, v0")
    e("v_add_u32 v1, s25, v1")
    for rb in range(16):
        e(f"s_mov_b32 s26, {rb*32*1088}")
        e(f"buffer_load_dword v{16+rb}, v1, s[20:23], s26 offen")
    e("v_cmp_gt_u32 vcc, 16, v0")
    e("s_and_saveexec_b64 s[40:41], vcc")
    for rb in range(16):
        e(f"s_mov_b32 s26, {rb*32*1088}")
        e(f"buffer_load_dword v{32+rb}, v1, s[20:23], s26 offen offset:1024")
    e("s_mov_b64 exec, s[40:41]")
    e("s_waitcnt vmcnt(0)")
    for st in (1, 2, 4, 8):
        for i in range(0, 16, 2 * st):
            e(f"v_add_f32 v{16+i}, v{16+i}, v{16+i+st}")
    e("v_cvt_pk_bf16_f32 v16, v16, v16")
    e("v_and_b32 v2, 15, v0")
    e("v_lshrrev_b32 v3, 4, v0")
    e("v_lshlrev_b32 v2, 5, v2")
    e("v_lshl_add_u32 v2, v3, 1, v2")
    e("s_lshl_b32 s26, s2, 10")
    e(f"s_add_u32 s26, s26, 0x{WS_KVZ:x}")
    e("v_add_u32 v2, s26, v2")
    e("buffer_store_short v16, v2, s[20:23], 0 offen")
    e("v_cmp_gt_u32 vcc, 16, v0")
    e("s_and_saveexec_b64 s[40:41], vcc")
    e("s_cbranch_execz KR_END")
    for st in (1, 2, 4, 8):
        for i in range(0, 16, 2 * st):
            e(f"v_add_f32 v{32+i}, v{32+i}, v{32+i+st}")
    e("v_cvt_pk_bf16_f32 v32, v32, v32")
    e("v_lshlrev_b32 v2, 1, v0")
    e("v_add_u32 v2, s26, v2")
    e(f"buffer_store_short v32, v2, s[20:23], 0 offen offset:{16*32}")
    e(f"buffer_store_short v32, v2, s[20:23], 0 offen offset:{20*32}")
    out.append("KR_END:")
    e("s_endpgm")
    return name


def k2():
    name = "k2_attnout_kernel"
    kernel_begin(name)
    e("s_cmp_ge_u32 s2, 256")
    e("s_cbranch_scc1 K2_END")
    e("s_load_dwordx2 s[4:5], s[0:1], 0")
    e("s_load_dwordx2 s[6:7], s[0:1], 16")
    e("s_load_dwordx2 s[8:9], s[0:1], 72")
    common_ids()
    e("s_lshr_b32 s25, s2, 4")
    e("s_and_b32 s26, s2, 15")
    e("s_waitcnt lgkmcnt(0)")
    srd(12, 4, S * D * 2)
    srd(16, 6, D * D * 2)
    srd(20, 8, WS_END)
    A = 16
    ACC = 144
    DS = [160, 176, 192]
    BF = [208, 212]
    XR = 216
    T = 224
    e("s_lshl_b32 s27, s25, 7")
    e("s_lshl_b32 s28, s24, 5")
    e("s_add_u32 s27, s27, s28")
    e("v_add_u32 v8, s27, v2")
    e("v_lshrrev_b32 v10, 2, v1")
    e("s_lshl_b32 s28, s24, 7")
    e("v_add_u32 v10, s28, v10")
    e("v_lshlrev_b32 v10, 10, v10")
    e("v_and_b32 v11, 3, v1")
    e("v_lshl_add_u32 v10, v11, 4, v10")
    e("s_lshl_b32 s29, s26, 6")
    e("v_add_u32 v10, s29, v10")
    e("s_lshl_b32 s30, s24, 13")
    for i in range(8):
        e(f"s_mov_b32 s31, {i*16384}")
        e(f"s_add_u32 m0, s30, {i*1024}")
        e("s_nop 0")
        e("buffer_load_dwordx4 v10, s[16:19], s31 offen lds")
    e("v_lshlrev_b32 v11, 5, v2")
    e("v_lshl_add_u32 v11, v3, 4, v11")
    e(f"v_add_u32 v11, 0x{WS_KVZ:x}, v11")
    e("v_lshlrev_b32 v9, 10, v8")
    e("v_lshl_add_u32 v9, v3, 4, v9")
    for h in range(32):
        if h % 4 == 0 and h:
            e("v_add_u32 v11, 0x1000, v11")
        if h == 24:
            e("s_waitcnt vmcnt(32)")
        e(f"buffer_load_dwordx4 a[{4*h}:{4*h+3}], v11, s[20:23], 0 offen offset:{(h%4)*1024}")
        e(f"buffer_load_dwordx4 v[{A+4*h}:{A+4*h+3}], v9, s[20:23], 0 offen offset:{WS_PQ + 32*h}")
    e("v_lshlrev_b32 v9, 10, v8")
    e("v_lshl_add_u32 v9, v3, 3, v9")
    e("s_lshl_b32 s29, s26, 6")
    e("v_add_u32 v9, s29, v9")
    for q in range(4):
        e(f"buffer_load_dwordx2 v[{XR+2*q}:{XR+2*q+1}], v9, s[12:15], 0 offen offset:{16*q}")
    tr_base(12, True)

    def omfma(h):
        d = DS[h % 3]
        e(f"v_mfma_f32_32x32x16_bf16 v[{d}:{d+15}], a[{4*h}:{4*h+3}], v[{A+4*h}:{A+4*h+3}], 0")

    def oproc(h):
        d = DS[h % 3]
        ops = [f"v_add_f32 v{T}, 0x358637bd, v{d+8}",
               f"v_rcp_f32 v{T}, v{T}",
               "s_nop 0"]
        for m in range(8):
            ops.append(f"v_mul_f32 v{d+m}, v{d+m}, v{T}")
        for m in range(4):
            ops.append(f"v_cvt_pk_bf16_f32 v{A+4*h+m}, v{d+2*m}, v{d+2*m+1}")
        return ops

    def reads(j, buf):
        b = BF[buf]
        e(f"ds_read_b64_tr_b16 v[{b}:{b+1}], v12 offset:{j*1024}")
        e(f"ds_read_b64_tr_b16 v[{b+2}:{b+3}], v12 offset:{j*1024+512}")

    e("s_waitcnt vmcnt(4)")
    e("s_barrier")
    omfma(0)
    omfma(1)
    reads(0, 0)
    e("s_nop 7")
    e("s_nop 7")
    for op in oproc(0):
        e(op)
    for j in range(32):
        b = BF[j & 1]
        if j + 2 < 32:
            omfma(j + 2)
        if j + 1 < 32:
            reads(j + 1, (j + 1) & 1)
            for op in oproc(j + 1):
                e(op)
            e("s_waitcnt lgkmcnt(2)")
        else:
            e("s_waitcnt lgkmcnt(0)")
            e("s_nop 1")
        cc = "0" if j == 0 else f"v[{ACC}:{ACC+15}]"
        e(f"v_mfma_f32_32x32x16_bf16 v[{ACC}:{ACC+15}], v[{b}:{b+3}], v[{A+4*j}:{A+4*j+3}], {cc}")
    e("s_nop 7")
    e("s_nop 7")
    e("s_waitcnt vmcnt(0)")
    for q in range(4):
        for i in range(2):
            x = XR + 2 * q + i
            e(f"v_lshlrev_b32 v{T}, 16, v{x}")
            e(f"v_and_b32 v{T+1}, 0xffff0000, v{x}")
            e(f"v_add_f32 v{T}, v{T}, v{ACC+4*q+2*i}")
            e(f"v_add_f32 v{T+1}, v{T+1}, v{ACC+4*q+2*i+1}")
            e(f"v_cvt_pk_bf16_f32 v{x}, v{T}, v{T+1}")
    e(f"v_add_u32 v9, 0x{WS_H:x}, v9")
    for q in range(4):
        e(f"buffer_store_dwordx2 v[{XR+2*q}:{XR+2*q+1}], v9, s[20:23], 0 offen offset:{16*q}")
    out.append("K2_END:")
    e("s_endpgm")
    return name


def k3():
    name = "k3_gateup_kernel"
    kernel_begin(name)
    e("s_cmp_ge_u32 s2, 256")
    e("s_cbranch_scc1 K3_END")
    e("s_load_dwordx2 s[4:5], s[0:1], 32")
    e("s_load_dwordx2 s[6:7], s[0:1], 40")
    e("s_load_dwordx2 s[8:9], s[0:1], 72")
    common_ids()
    e("s_lshr_b32 s25, s2, 4")
    e("s_and_b32 s26, s2, 15")
    e("s_waitcnt lgkmcnt(0)")
    srd(12, 4, D * F * 2)
    srd(16, 6, D * F * 2)
    srd(20, 8, WS_END)
    A = 16
    ACG, ACU = 144, 160
    BF = [176, 184]
    T = 192
    e("s_lshl_b32 s27, s25, 7")
    e("s_lshl_b32 s28, s24, 5")
    e("s_add_u32 s27, s27, s28")
    e("v_add_u32 v8, s27, v2")
    e("v_lshlrev_b32 v9, 10, v8")
    e("v_lshl_add_u32 v9, v3, 4, v9")
    e(f"v_add_u32 v9, 0x{WS_H:x}, v9")
    for j in range(32):
        e(f"buffer_load_dwordx4 v[{A+4*j}:{A+4*j+3}], v9, s[20:23], 0 offen offset:{32*j}")
    e("v_lshrrev_b32 v10, 2, v1")
    e("s_lshl_b32 s28, s24, 7")
    e("v_add_u32 v10, s28, v10")
    e("s_movk_i32 s29, 2752")
    e("v_mul_lo_u32 v10, v10, s29")
    e("v_and_b32 v11, 3, v1")
    e("v_lshl_add_u32 v10, v11, 4, v10")
    e("s_lshl_b32 s29, s26, 6")
    e("v_add_u32 v10, s29, v10")
    e("s_lshl_b32 s30, s24, 13")

    def dma(t):
        buf = (t & 1) * 65536
        for p in range(2):
            for i in range(8):
                e(f"s_mov_b32 s31, {t*1024 + i*16*2752}")
                e(f"s_add_u32 m0, s30, {buf + p*32768 + i*1024}")
                e("s_nop 0")
                e(f"buffer_load_dwordx4 v10, s[{12+4*p}:{15+4*p}], s31 offen lds")

    dma(0)
    tr_base(12, False)
    e("v_add_u32 v13, 0x10000, v12")
    e("s_waitcnt vmcnt(16)")
    dma(1)
    RS, NB = 14, 15
    ln_stats(A, RS, NB, T)
    for r in range(4):
        for op in ln_apply_ops(A + r, RS, NB, T):
            e(op)
    e("s_movk_i32 s29, 2752")
    e("v_mul_lo_u32 v9, v8, s29")
    e("v_lshl_add_u32 v9, v3, 3, v9")
    e("s_lshl_b32 s29, s26, 6")
    e("v_add_u32 v9, s29, v9")
    e(f"v_add_u32 v9, 0x{WS_HH:x}, v9")

    def unit(t, last):
        va = 12 if (t & 1) == 0 else 13

        def reads(j, buf):
            b = BF[buf]
            e(f"ds_read_b64_tr_b16 v[{b}:{b+1}], v{va} offset:{j*1024}")
            e(f"ds_read_b64_tr_b16 v[{b+2}:{b+3}], v{va} offset:{j*1024+256}")
            e(f"ds_read_b64_tr_b16 v[{b+4}:{b+5}], v{va} offset:{32768+j*1024}")
            e(f"ds_read_b64_tr_b16 v[{b+6}:{b+7}], v{va} offset:{32768+j*1024+256}")
        reads(0, 0)
        for j in range(32):
            b = BF[j & 1]
            if j + 1 < 32:
                reads(j + 1, (j + 1) & 1)
                e("s_waitcnt lgkmcnt(4)")
            else:
                e("s_waitcnt lgkmcnt(0)")
            a = f"v[{A+4*j}:{A+4*j+3}]"
            cg = "0" if j == 0 else f"v[{ACG}:{ACG+15}]"
            cu = "0" if j == 0 else f"v[{ACU}:{ACU+15}]"
            main = [
                f"v_mfma_f32_32x32x16_bf16 v[{ACG}:{ACG+15}], v[{b}:{b+3}], {a}, {cg}",
                f"v_mfma_f32_32x32x16_bf16 v[{ACU}:{ACU+15}], v[{b+4}:{b+7}], {a}, {cu}",
            ]
            fill = []
            if t == 0 and j + 1 < 32:
                for r in range(4):
                    fill += ln_apply_ops(A + 4 * (j + 1) + r, RS, NB, T + 2 * (r & 1))
            interleave(main, fill)
        e("s_nop 7")
        e("s_nop 7")
        for i in range(16):
            e(f"v_mul_f32 v{ACG+i}, v{ACG+i}, v{ACU+i}")
        for q in range(4):
            e(f"v_cvt_pk_bf16_f32 v{T+2*q}, v{ACG+4*q}, v{ACG+4*q+1}")
            e(f"v_cvt_pk_bf16_f32 v{T+2*q+1}, v{ACG+4*q+2}, v{ACG+4*q+3}")
        for q in range(4):
            e(f"buffer_store_dwordx2 v[{T+2*q}:{T+2*q+1}], v9, s[20:23], 0 offen offset:{t*1024 + 16*q}")

    e("s_waitcnt vmcnt(16)")
    e("s_barrier")
    unit(0, False)
    e("s_barrier")
    e("s_cmp_ge_u32 s26, 11")
    e("s_cbranch_scc1 K3_NO3A")
    dma(2)
    e("s_waitcnt vmcnt(20)")
    e("s_branch K3_U1")
    out.append("K3_NO3A:")
    e("s_waitcnt vmcnt(4)")
    out.append("K3_U1:")
    e("s_barrier")
    unit(1, False)
    e("s_cmp_ge_u32 s26, 11")
    e("s_cbranch_scc1 K3_END")
    e("s_waitcnt vmcnt(4)")
    e("s_barrier")
    unit(2, True)
    out.append("K3_END:")
    e("s_endpgm")
    return name


def k4():
    name = NAME + "_kernel"
    kernel_begin(name)
    e("s_cmp_ge_u32 s2, 256")
    e("s_cbranch_scc1 K4_END")
    e("s_load_dwordx2 s[4:5], s[0:1], 48")
    e("s_load_dwordx2 s[6:7], s[0:1], 56")
    e("s_load_dwordx2 s[8:9], s[0:1], 72")
    common_ids()
    e("s_lshr_b32 s25, s2, 4")
    e("s_and_b32 s26, s2, 15")
    e("s_waitcnt lgkmcnt(0)")
    srd(12, 4, F * D * 2)
    srd(16, 6, S * D * 2)
    srd(20, 8, WS_END)
    NK = F // 16
    PD = 24
    A = 16
    ACC = 144
    BF = [160, 164]
    XR = 168
    T = 176
    e("s_lshl_b32 s27, s25, 7")
    e("s_lshl_b32 s28, s24, 5")
    e("s_add_u32 s27, s27, s28")
    e("v_add_u32 v8, s27, v2")
    e("v_lshlrev_b32 v9, 10, v8")
    e("v_lshl_add_u32 v9, v3, 3, v9")
    e("s_lshl_b32 s29, s26, 6")
    e("v_add_u32 v9, s29, v9")
    e(f"v_add_u32 v14, 0x{WS_H:x}, v9")
    for q in range(4):
        e(f"buffer_load_dwordx2 v[{XR+2*q}:{XR+2*q+1}], v14, s[20:23], 0 offen offset:{16*q}")
    e("v_lshrrev_b32 v10, 2, v1")
    e("s_lshl_b32 s28, s24, 4")
    e("v_add_u32 v10, s28, v10")
    e("v_lshlrev_b32 v10, 10, v10")
    e("v_and_b32 v11, 3, v1")
    e("v_lshl_add_u32 v10, v11, 4, v10")
    e("s_lshl_b32 s29, s26, 6")
    e("v_add_u32 v10, s29, v10")
    e("s_lshl_b32 s30, s24, 10")
    for ii in range(22):
        if ii == 21:
            e("s_cmp_ge_u32 s24, 2")
            e("s_cbranch_scc1 K4_DMADONE")
        e(f"s_mov_b32 s31, {ii*4*16*1024}")
        e(f"s_add_u32 m0, s30, {ii*4096}")
        e("s_nop 0")
        e("buffer_load_dwordx4 v10, s[12:15], s31 offen lds")
    out.append("K4_DMADONE:")
    e("s_movk_i32 s29, 2752")
    e("v_mul_lo_u32 v15, v8, s29")
    e("v_lshl_add_u32 v15, v3, 4, v15")
    e(f"v_add_u32 v15, 0x{WS_HH:x}, v15")

    def aload(j):
        s = A + 4 * (j % PD)
        e(f"buffer_load_dwordx4 v[{s}:{s+3}], v15, s[20:23], 0 offen offset:{32*j}")
    for j in range(PD):
        aload(j)
    tr_base(12, False)
    e("v_add_u32 v13, 0x10000, v12")
    e(f"s_waitcnt vmcnt({PD})")
    e("s_barrier")

    def reads(j, buf):
        b = BF[buf]
        off = j * 1024
        va = 12
        if off + 256 > 65535:
            va, off = 13, off - 65536
        e(f"ds_read_b64_tr_b16 v[{b}:{b+1}], v{va} offset:{off}")
        e(f"ds_read_b64_tr_b16 v[{b+2}:{b+3}], v{va} offset:{off+256}")
    reads(0, 0)
    for j in range(NK):
        b = BF[j & 1]
        if j + 1 < NK:
            reads(j + 1, (j + 1) & 1)
        outstanding = min(PD, NK - j)
        lg = 2 if j + 1 < NK else 0
        e(f"s_waitcnt vmcnt({outstanding-1}) lgkmcnt({lg})")
        s = A + 4 * (j % PD)
        cc = "0" if j == 0 else f"v[{ACC}:{ACC+15}]"
        e(f"v_mfma_f32_32x32x16_bf16 v[{ACC}:{ACC+15}], v[{b}:{b+3}], v[{s}:{s+3}], {cc}")
        if j + PD < NK:
            aload(j + PD)
    e("s_nop 7")
    e("s_nop 7")
    for q in range(4):
        for i in range(2):
            x = XR + 2 * q + i
            e(f"v_lshlrev_b32 v{T}, 16, v{x}")
            e(f"v_and_b32 v{T+1}, 0xffff0000, v{x}")
            e(f"v_add_f32 v{T}, v{T}, v{ACC+4*q+2*i}")
            e(f"v_add_f32 v{T+1}, v{T+1}, v{ACC+4*q+2*i+1}")
            e(f"v_cvt_pk_bf16_f32 v{x}, v{T}, v{T+1}")
    for q in range(4):
        e(f"buffer_store_dwordx2 v[{XR+2*q}:{XR+2*q+1}], v9, s[16:19], 0 offen offset:{16*q}")
    out.append("K4_END:")
    e("s_endpgm")
    return name


def main():
    hdr = open("cdna_kernels/%s.s.ref" % NAME).read().splitlines()
    for l in hdr:
        if "@launch" in l and "grid=(4096" in l:
            break
        out.append(l.replace("@launch", "launch"))
    out.append("; @launch kernel=k1_qkv_kernel grid=(256,1,1) block=(256,1,1) lds=98304")
    out.append("; @launch kernel=kr_reduce_kernel grid=(32,1,1) block=(256,1,1) lds=0")
    out.append("; @launch kernel=k2_attnout_kernel grid=(256,1,1) block=(256,1,1) lds=32768")
    out.append("; @launch kernel=k3_gateup_kernel grid=(256,1,1) block=(256,1,1) lds=131072")
    out.append(f"; @launch kernel={NAME}_kernel grid=(256,1,1) block=(256,1,1) lds=88064")
    out.append('.amdgcn_target "amdgcn-amd-amdhsa--gfx950"')
    out.append(".text")
    n1 = k1()
    nr = kr()
    n2 = k2()
    n3 = k3()
    n4 = k4()
    out.append('.section .rodata,"a"')
    out.append(".p2align 6")
    kdesc(n1, 256, 256)
    out.append(".p2align 6")
    kdesc(nr, 64, 64)
    out.append(".p2align 6")
    kdesc(n2, 384, 256)
    out.append(".p2align 6")
    kdesc(n3, 256, 256)
    out.append(".p2align 6")
    kdesc(n4, 256, 256)
    path = sys.argv[1] if len(sys.argv) > 1 else "cdna_kernels/%s.s" % NAME
    open(path, "w").write("\n".join(out) + "\n")


main()
```

```python
import sys

NAME = "sequential_preLN__linear_attn_block__glu_gated_bilinear__prompt"
S, D, F = 2048, 512, 1376
WS_PQ = 0x000000
WS_PART = 0x200000
WS_KVZ = 0x300000
WS_H = 0x400000
WS_HH = 0x600000
WS_END = 0x600000 + S * F * 2

out = []


def e(s=""):
    out.append("    " + s if s and not s.endswith(":") else s)


def c(s):
    out.append("    ; " + s)


def srd(base, ptr, size, off=0):
    if off:
        e(f"s_add_u32 s{base}, s{ptr}, 0x{off:x}")
        e(f"s_addc_u32 s{base+1}, s{ptr+1}, 0")
    else:
        e(f"s_mov_b32 s{base}, s{ptr}")
        e(f"s_mov_b32 s{base+1}, s{ptr+1}")
    e(f"s_mov_b32 s{base+2}, 0x{size:x}")
    e(f"s_mov_b32 s{base+3}, 0x00020000")


def kernel_begin(name):
    out.append(".p2align 8")
    out.append(f".globl {name}")
    out.append(f".type {name},@function")
    out.append(f"{name}:")


def kdesc(name, vgpr, accum, sgpr=96):
    out.append(f".amdhsa_kernel {name}")
    out.append(f"  .amdhsa_next_free_vgpr {vgpr}")
    out.append(f"  .amdhsa_next_free_sgpr {sgpr}")
    out.append(f"  .amdhsa_accum_offset {accum}")
    out.append("  .amdhsa_group_segment_fixed_size 0")
    out.append("  .amdhsa_kernarg_size 80")
    out.append("  .amdhsa_user_sgpr_count 2")
    out.append("  .amdhsa_user_sgpr_kernarg_segment_ptr 1")
    out.append("  .amdhsa_system_sgpr_workgroup_id_x 1")
    out.append(".end_amdhsa_kernel")


STAMP = len(sys.argv) > 2 and sys.argv[2] == "stamp"
WS_STAMP = 0xF000000


def stamp(kidx, n):
    if not STAMP:
        return
    e("s_memtime s[60:61]")
    e("s_waitcnt lgkmcnt(0)")
    e("v_mov_b32 v254, s60")
    e("s_lshl_b32 s62, s2, 2")
    e("s_add_u32 s62, s62, s24")
    e("s_lshl_b32 s62, s62, 5")
    e(f"s_add_u32 s62, s62, {WS_STAMP + kidx*0x10000 + n*4}")
    e("v_mov_b32 v255, s62")
    e("buffer_store_dword v254, v255, s[64:67], 0 offen")


def stamp_init():
    if not STAMP:
        return
    srd(64, 8, 0x10000000)


def wg_map():
    e("s_and_b32 s25, s2, 7")
    e("s_lshl_b32 s25, s25, 1")
    e("s_bfe_u32 s26, s2, 0x10003")
    e("s_or_b32 s25, s25, s26")
    e("s_lshr_b32 s26, s2, 4")


def common_ids():
    e("v_and_b32 v1, 63, v0")
    e("v_lshrrev_b32 v4, 6, v0")
    e("s_nop 0")
    e("v_readfirstlane_b32 s24, v4")
    e("v_and_b32 v2, 31, v1")
    e("v_lshrrev_b32 v3, 5, v1")


def tr_base(dst, kperm):
    e("v_bfe_u32 v5, v1, 2, 2")
    e("v_and_b32 v6, 3, v1")
    e("v_bfe_u32 v7, v1, 4, 1")
    e(f"v_lshlrev_b32 v{dst}, {2 if kperm else 3}, v3")
    e(f"v_add_u32 v{dst}, v{dst}, v5")
    e(f"v_lshlrev_b32 v{dst}, 6, v{dst}")
    e(f"v_lshl_add_u32 v{dst}, v7, 5, v{dst}")
    e(f"v_lshl_add_u32 v{dst}, v6, 3, v{dst}")


def ln_stats(A, rs, nb, t0):
    s0, s1, q0, q1, ones = t0, t0 + 1, t0 + 2, t0 + 3, t0 + 4
    e(f"v_mov_b32 v{ones}, 0x3f803f80")
    for r in (s0, s1, q0, q1):
        e(f"v_mov_b32 v{r}, 0")
    for i in range(128):
        e(f"v_dot2c_f32_bf16 v{s0 if i % 2 == 0 else s1}, v{A+i}, v{ones}")
        e(f"v_dot2c_f32_bf16 v{q0 if i % 2 == 0 else q1}, v{A+i}, v{A+i}")
    e("s_nop 3")
    e(f"v_add_f32 v{s0}, v{s0}, v{s1}")
    e(f"v_add_f32 v{q0}, v{q0}, v{q1}")
    e(f"v_mov_b32 v{s1}, v{s0}")
    e(f"v_mov_b32 v{q1}, v{q0}")
    e("s_nop 1")
    e(f"v_permlane32_swap_b32 v{s0}, v{s1}")
    e(f"v_permlane32_swap_b32 v{q0}, v{q1}")
    e("s_nop 1")
    e(f"v_add_f32 v{s0}, v{s0}, v{s1}")
    e(f"v_add_f32 v{q0}, v{q0}, v{q1}")
    e(f"v_mul_f32 v{s0}, 0x3b000000, v{s0}")
    e(f"v_mul_f32 v{q0}, 0x3b000000, v{q0}")
    e(f"v_fma_f32 v{q0}, -v{s0}, v{s0}, v{q0}")
    e(f"v_max_f32 v{q0}, 0, v{q0}")
    e(f"v_add_f32 v{q0}, 0x3727c5ac, v{q0}")
    e(f"v_rsq_f32 v{rs}, v{q0}")
    e("s_nop 0")
    e(f"v_mul_f32 v{nb}, v{s0}, v{rs}")
    e(f"v_sub_f32 v{nb}, 0, v{nb}")


def ln_apply_ops(reg, rs, nb, t0):
    lo, hi = t0, t0 + 1
    return [
        f"v_lshlrev_b32 v{lo}, 16, v{reg}",
        f"v_and_b32 v{hi}, 0xffff0000, v{reg}",
        f"v_fma_f32 v{lo}, v{lo}, v{rs}, v{nb}",
        f"v_fma_f32 v{hi}, v{hi}, v{rs}, v{nb}",
        f"v_cvt_pk_bf16_f32 v{reg}, v{lo}, v{hi}",
    ]


def phi_ops(regs, tmp):
    n = len(regs)
    for i, r in enumerate(regs):
        e(f"v_mul_f32 v{tmp+i}, 0x3fb8aa3b, v{r}")
    for i, r in enumerate(regs):
        e(f"v_min_f32 v{tmp+i}, 0, v{tmp+i}")
    for i, r in enumerate(regs):
        e(f"v_exp_f32 v{tmp+i}, v{tmp+i}")
    for i, r in enumerate(regs):
        e(f"v_max_f32 v{r}, 0, v{r}")
    for i, r in enumerate(regs):
        e(f"v_add_f32 v{tmp+i}, 0x358637bd, v{tmp+i}")
    for i, r in enumerate(regs):
        e(f"v_add_f32 v{r}, v{r}, v{tmp+i}")


def interleave(main, fill):
    n = len(main)
    k = 0
    for i, m in enumerate(main):
        e(m)
        tgt = (len(fill) * (i + 1)) // n
        while k < tgt:
            e(fill[k])
            k += 1


class Lg:
    def __init__(self, name="lgkmcnt", cap=15):
        self.q = []
        self.name = name
        self.cap = cap

    def issue(self, tag):
        self.q.append(tag)

    def wait(self, tags):
        idx = -1
        for i, t in enumerate(self.q):
            if t in tags:
                idx = i
        if idx < 0:
            return
        n = len(self.q) - 1 - idx
        e(f"s_waitcnt {self.name}({min(n, self.cap)})")
        self.q = self.q[len(self.q) - min(n, self.cap):] if min(n, self.cap) else []


def spread(main, fill, emit):
    n = len(main)
    k = 0
    for i, mm in enumerate(main):
        e(mm)
        tgt = (len(fill) * (i + 1)) // n
        while k < tgt:
            emit(fill[k])
            k += 1


def k1():
    name = "k1_qkv_kernel"
    kernel_begin(name)
    e("s_cmp_ge_u32 s2, 256")
    e("s_cbranch_scc1 K1_END")
    e("s_load_dwordx2 s[4:5], s[0:1], 0")
    e("s_load_dwordx2 s[6:7], s[0:1], 8")
    e("s_load_dwordx2 s[8:9], s[0:1], 72")
    common_ids()
    wg_map()
    e("s_waitcnt lgkmcnt(0)")
    srd(12, 4, S * D * 2)
    srd(16, 6, D * 3 * D * 2)
    srd(20, 8, WS_END)
    stamp_init()
    stamp(0, 0)
    A = 16
    ACQ, ACK, ACV = 144, 160, 176
    WA, RA = 192, 196
    RSN = 200
    T = 216
    BF = [0, 12]
    AF = [24, 40]
    e("s_lshl_b32 s27, s25, 7")
    e("s_lshl_b32 s28, s24, 5")
    e("s_add_u32 s27, s27, s28")
    e("v_lshrrev_b32 v8, 3, v1")
    e("v_and_b32 v11, 7, v1")
    e("v_add_u32 v9, s27, v8")
    e("v_lshlrev_b32 v9, 10, v9")
    e("v_lshl_add_u32 v9, v11, 4, v9")
    for c in range(8):
        for m in range(4):
            e(f"s_mov_b32 s31, {m*8192}")
            r = A + (m * 8 + c) * 4
            e(f"buffer_load_dwordx4 v[{r}:{r+3}], v9, s[12:15], s31 offen offset:{128*c}")
    e("v_lshrrev_b32 v10, 2, v1")
    e("s_lshl_b32 s28, s24, 5")
    e("v_add_u32 v10, s28, v10")
    e("s_movk_i32 s29, 3072")
    e("v_mul_lo_u32 v10, v10, s29")
    e("v_and_b32 v14, 3, v1")
    e("v_lshl_add_u32 v10, v14, 4, v10")
    e("s_lshl_b32 s29, s26, 6")
    e("v_add_u32 v10, s29, v10")
    e("s_lshl_b32 s30, s24, 11")
    for qq in range(4):
        for i in range(2):
            for p in range(3):
                e(f"s_mov_b32 s31, {p*1024 + (128*qq + 16*i)*3072}")
                e(f"s_add_u32 m0, s30, {p*32768 + (128*qq + 16*i)*64}")
                e("s_nop 0")
                e("buffer_load_dwordx4 v10, s[16:19], s31 offen lds")
    tr_base(12, False)
    e("v_add_u32 v13, 0x10000, v12")
    e("s_lshl_b32 s28, s24, 13")
    e("s_add_u32 s28, s28, 98304")
    for m in range(4):
        e(f"v_add_u32 v14, {8*m}, v8")
        e("v_bfe_u32 v15, v14, 1, 3")
        e("v_xor_b32 v15, v15, v11")
        e("v_lshlrev_b32 v15, 4, v15")
        e(f"v_lshl_add_u32 v{WA+m}, v14, 7, v15")
        e(f"v_add_u32 v{WA+m}, s28, v{WA+m}")
    for t in range(4):
        e(f"v_add_u32 v14, {2*t}, v3")
        e("v_bfe_u32 v15, v2, 1, 3")
        e("v_xor_b32 v15, v15, v14")
        e("v_lshlrev_b32 v15, 4, v15")
        e(f"v_lshl_add_u32 v{RA+t}, v2, 7, v15")
        e(f"v_add_u32 v{RA+t}, s28, v{RA+t}")
    stamp(0, 1)
    e("s_waitcnt vmcnt(24)")
    stamp(0, 2)
    SM, QM, ONE = T, T + 4, T + 8
    e(f"v_mov_b32 v{ONE}, 0x3f803f80")
    for m in range(4):
        e(f"v_mov_b32 v{SM+m}, 0")
        e(f"v_mov_b32 v{QM+m}, 0")
    for c in range(8):
        for r in range(4):
            for m in range(4):
                reg = A + (m * 8 + c) * 4 + r
                e(f"v_dot2c_f32_bf16 v{SM+m}, v{reg}, v{ONE}")
                e(f"v_dot2c_f32_bf16 v{QM+m}, v{reg}, v{reg}")
    e("s_nop 3")
    for dpp in ("quad_perm:[1,0,3,2]", "quad_perm:[2,3,0,1]", "row_half_mirror"):
        for i in range(8):
            e(f"v_add_f32_dpp v{T+i}, v{T+i}, v{T+i} {dpp} row_mask:0xf bank_mask:0xf")
        e("s_nop 1")
    for m in range(4):
        e(f"v_mul_f32 v{SM+m}, 0x3b000000, v{SM+m}")
        e(f"v_mul_f32 v{QM+m}, 0x3b000000, v{QM+m}")
    for m in range(4):
        e(f"v_fma_f32 v{QM+m}, -v{SM+m}, v{SM+m}, v{QM+m}")
    for m in range(4):
        e(f"v_max_f32 v{QM+m}, 0, v{QM+m}")
    for m in range(4):
        e(f"v_add_f32 v{QM+m}, 0x3727c5ac, v{QM+m}")
    for m in range(4):
        e(f"v_rsq_f32 v{RSN+m}, v{QM+m}")
    e("s_nop 0")
    for m in range(4):
        e(f"v_mul_f32 v{RSN+4+m}, v{SM+m}, v{RSN+m}")
    for m in range(4):
        e(f"v_sub_f32 v{RSN+4+m}, 0, v{RSN+4+m}")

    lg = Lg()

    def nw_ops(c, m):
        ops = []
        base = A + (m * 8 + c) * 4
        for r in range(4):
            ops += ln_apply_ops(base + r, RSN + m, RSN + 4 + m, T + 10 + 2 * (r & 1))
        ops.append(("W", f"ds_write_b128 v{WA+m}, v[{base}:{base+3}] offset:{(c&1)*4096}", ("w", c)))
        return ops

    def emit(op):
        if isinstance(op, tuple):
            e(op[1])
            lg.issue(op[2])
        else:
            e(op)

    def rd(c):
        for t in range(4):
            a = AF[c & 1] + 4 * t
            e(f"ds_read_b128 a[{a}:{a+3}], v{RA+t} offset:{(c&1)*4096}")
            lg.issue(("a", c))

    def reads(j):
        b = BF[j & 1]
        for (va, off, k) in ((12, j*1024, 0), (12, j*1024+256, 2), (12, 32768+j*1024, 4),
                             (12, 32768+j*1024+256, 6), (13, j*1024, 8), (13, j*1024+256, 10)):
            e(f"ds_read_b64_tr_b16 a[{b+k}:{b+k+1}], v{va} offset:{off}")
            lg.issue(("b", j))

    for m in range(4):
        for op in nw_ops(0, m):
            emit(op)
    rd(0)
    e("s_waitcnt vmcnt(18)")
    e("s_barrier")
    stamp(0, 3)
    reads(0)
    for j in range(32):
        c, t = j // 4, j % 4
        b = BF[j & 1]
        if j + 1 < 32:
            if (j + 1) % 8 == 0:
                qq = (j + 1) // 8
                e(f"s_waitcnt vmcnt({6*(3-qq)})")
                e("s_barrier")
            reads(j + 1)
        if t == 3 and c + 1 < 8:
            rd(c + 1)
        lg.wait({("b", j), ("a", c)})
        a = f"a[{AF[c&1]+4*t}:{AF[c&1]+4*t+3}]"
        cq = "0" if j == 0 else f"v[{ACQ}:{ACQ+15}]"
        ck = "0" if j == 0 else f"v[{ACK}:{ACK+15}]"
        cv = "0" if j == 0 else f"v[{ACV}:{ACV+15}]"
        main = [
            f"v_mfma_f32_32x32x16_bf16 v[{ACQ}:{ACQ+15}], a[{b}:{b+3}], {a}, {cq}",
            f"v_mfma_f32_32x32x16_bf16 v[{ACK}:{ACK+15}], {a}, a[{b+4}:{b+7}], {ck}",
            f"v_mfma_f32_32x32x16_bf16 v[{ACV}:{ACV+15}], {a}, a[{b+8}:{b+11}], {cv}",
        ]
        fill = []
        if c + 1 < 8:
            for m in {0: (0, 1), 1: (2,), 2: (3,), 3: ()}[t]:
                fill += nw_ops(c + 1, m)
        n = len(main)
        k = 0
        for i, mm in enumerate(main):
            e(mm)
            tgt = (len(fill) * (i + 1)) // n
            while k < tgt:
                emit(fill[k])
                k += 1
    e("s_nop 7")
    e("s_nop 7")
    stamp(0, 4)
    phi_ops([ACQ + i for i in range(16)], T)
    e("s_lshl_b32 s27, s25, 2")
    e("s_add_u32 s27, s27, s24")
    e("s_lshl_b32 s27, s27, 15")
    e("s_lshl_b32 s29, s26, 11")
    e("s_add_u32 s27, s27, s29")
    e("v_lshlrev_b32 v9, 4, v1")
    e("v_add_u32 v9, s27, v9")
    for q in range(4):
        e(f"v_cvt_pk_bf16_f32 v{T+2*q}, v{ACQ+4*q}, v{ACQ+4*q+1}")
        e(f"v_cvt_pk_bf16_f32 v{T+2*q+1}, v{ACQ+4*q+2}, v{ACQ+4*q+3}")
    for t in range(2):
        e(f"buffer_store_dwordx4 v[{T+4*t}:{T+4*t+3}], v9, s[20:23], 0 offen offset:{WS_PQ + 1024*t}")
    phi_ops([ACK + i for i in range(16)], T + 8)
    PK, VV, ON = A, A + 8, A + 16
    for m in range(8):
        e(f"v_cvt_pk_bf16_f32 v{PK+m}, v{ACK+2*m}, v{ACK+2*m+1}")
        e(f"v_cvt_pk_bf16_f32 v{VV+m}, v{ACV+2*m}, v{ACV+2*m+1}")
    for m in range(4):
        e(f"v_mov_b32 v{ON+m}, 0x3f803f80")
    e("s_nop 1")
    DKV, DZ = ACQ, ACK
    e(f"v_mfma_f32_32x32x16_bf16 v[{DKV}:{DKV+15}], v[{PK}:{PK+3}], v[{VV}:{VV+3}], 0")
    e(f"v_mfma_f32_32x32x16_bf16 v[{DZ}:{DZ+15}], v[{PK}:{PK+3}], v[{ON}:{ON+3}], 0")
    e(f"v_mfma_f32_32x32x16_bf16 v[{DKV}:{DKV+15}], v[{PK+4}:{PK+7}], v[{VV+4}:{VV+7}], v[{DKV}:{DKV+15}]")
    e(f"v_mfma_f32_32x32x16_bf16 v[{DZ}:{DZ+15}], v[{PK+4}:{PK+7}], v[{ON}:{ON+3}], v[{DZ}:{DZ+15}]")
    e("s_barrier")
    e("s_mul_i32 s29, s24, 2304")
    e("v_and_b32 v5, 15, v1")
    e("v_lshlrev_b32 v5, 2, v5")
    e("v_lshl_add_u32 v5, v7, 10, v5")
    e("v_lshl_add_u32 v5, v3, 8, v5")
    e("v_add_u32 v5, s29, v5")
    e("v_cmp_ne_u32 vcc, 0, v7")
    e("s_nop 7")
    e("s_nop 7")
    for m in range(8):
        e(f"v_cndmask_b32 v{T+m}, v{DKV+m}, v{DKV+8+m}, vcc")
    for m in range(8):
        e(f"ds_write_b32 v5, v{T+m} offset:{(m&3)*64 + (m>>2)*512}")
    e("v_lshlrev_b32 v6, 4, v3")
    e("v_add_u32 v6, s29, v6")
    e("v_add_u32 v6, 2048, v6")
    e("s_mov_b32 s40, 1")
    e("s_mov_b32 s41, 1")
    e("s_mov_b64 exec, s[40:41]")
    for r in range(16):
        e(f"ds_write_b32 v6, v{DZ+r} offset:{(r&3)*4 + (r>>2)*32}")
    e("s_mov_b64 exec, -1")
    e("s_waitcnt lgkmcnt(0)")
    e("s_barrier")
    e("v_lshlrev_b32 v5, 2, v0")
    for w in range(4):
        e(f"ds_read_b32 v{T+w}, v5 offset:{w*2304}")
        e(f"ds_read_b32 v{T+4+w}, v5 offset:{w*2304+1024}")
    e("v_cmp_gt_u32 vcc, 32, v0")
    e("s_and_saveexec_b64 s[40:41], vcc")
    for w in range(4):
        e(f"ds_read_b32 v{T+8+w}, v5 offset:{w*2304+2048}")
    e("s_mov_b64 exec, s[40:41]")
    e("s_lshl_b32 s29, s25, 5")
    e("s_lshl_b32 s30, s26, 1")
    e("s_add_u32 s29, s29, s30")
    e("s_mul_i32 s29, s29, 1088")
    e(f"s_add_u32 s29, s29, 0x{WS_PART:x}")
    e("v_add_u32 v6, s29, v5")
    e("s_waitcnt lgkmcnt(0)")
    e(f"v_add_f32 v{T}, v{T}, v{T+1}")
    e(f"v_add_f32 v{T+2}, v{T+2}, v{T+3}")
    e(f"v_add_f32 v{T+4}, v{T+4}, v{T+5}")
    e(f"v_add_f32 v{T+6}, v{T+6}, v{T+7}")
    e(f"v_add_f32 v{T}, v{T}, v{T+2}")
    e(f"v_add_f32 v{T+4}, v{T+4}, v{T+6}")
    e(f"buffer_store_dword v{T}, v6, s[20:23], 0 offen")
    e(f"buffer_store_dword v{T+4}, v6, s[20:23], 0 offen offset:1088")
    e("v_cmp_gt_u32 vcc, 32, v0")
    e("s_and_saveexec_b64 s[40:41], vcc")
    e("s_cbranch_execz K1_END")
    e(f"v_add_f32 v{T+8}, v{T+8}, v{T+9}")
    e(f"v_add_f32 v{T+10}, v{T+10}, v{T+11}")
    e(f"v_add_f32 v{T+8}, v{T+8}, v{T+10}")
    e("v_lshrrev_b32 v6, 4, v0")
    e("v_mul_u32_u24 v6, 1088, v6")
    e("v_and_b32 v7, 15, v0")
    e("v_lshl_add_u32 v6, v7, 2, v6")
    e("v_add_u32 v6, s29, v6")
    e(f"buffer_store_dword v{T+8}, v6, s[20:23], 0 offen offset:1024")
    stamp(0, 5)
    out.append("K1_END:")
    e("s_endpgm")
    return name


def kr():
    name = "kr_reduce_kernel"
    kernel_begin(name)
    e("s_cmp_ge_u32 s2, 32")
    e("s_cbranch_scc1 KR_END")
    e("s_load_dwordx2 s[8:9], s[0:1], 72")
    e("s_waitcnt lgkmcnt(0)")
    srd(20, 8, WS_END)
    e("s_mul_i32 s25, s2, 1088")
    e(f"s_add_u32 s25, s25, 0x{WS_PART:x}")
    e("v_lshlrev_b32 v1, 2, v0")
    e("v_add_u32 v1, s25, v1")
    for rb in range(16):
        e(f"s_mov_b32 s26, {rb*32*1088}")
        e(f"buffer_load_dword v{16+rb}, v1, s[20:23], s26 offen")
    e("v_cmp_gt_u32 vcc, 16, v0")
    e("s_and_saveexec_b64 s[40:41], vcc")
    for rb in range(16):
        e(f"s_mov_b32 s26, {rb*32*1088}")
        e(f"buffer_load_dword v{32+rb}, v1, s[20:23], s26 offen offset:1024")
    e("s_mov_b64 exec, s[40:41]")
    e("s_waitcnt vmcnt(0)")
    for st in (1, 2, 4, 8):
        for i in range(0, 16, 2 * st):
            e(f"v_add_f32 v{16+i}, v{16+i}, v{16+i+st}")
    e("v_cvt_pk_bf16_f32 v16, v16, v16")
    e("v_and_b32 v2, 15, v0")
    e("v_lshrrev_b32 v3, 4, v0")
    e("v_lshlrev_b32 v2, 5, v2")
    e("v_bfe_u32 v4, v3, 2, 1")
    e("v_lshl_add_u32 v2, v4, 4, v2")
    e("v_and_b32 v4, 3, v3")
    e("v_lshl_add_u32 v2, v4, 1, v2")
    e("v_lshrrev_b32 v4, 3, v3")
    e("v_lshl_add_u32 v2, v4, 3, v2")
    e("s_lshl_b32 s26, s2, 10")
    e(f"s_add_u32 s26, s26, 0x{WS_KVZ:x}")
    e("v_add_u32 v2, s26, v2")
    e("buffer_store_short v16, v2, s[20:23], 0 offen")
    e("v_cmp_gt_u32 vcc, 16, v0")
    e("s_and_saveexec_b64 s[40:41], vcc")
    e("s_cbranch_execz KR_END")
    for st in (1, 2, 4, 8):
        for i in range(0, 16, 2 * st):
            e(f"v_add_f32 v{32+i}, v{32+i}, v{32+i+st}")
    e("v_cvt_pk_bf16_f32 v32, v32, v32")
    e("v_bfe_u32 v4, v0, 2, 1")
    e("v_lshlrev_b32 v2, 4, v4")
    e("v_and_b32 v4, 3, v0")
    e("v_lshl_add_u32 v2, v4, 1, v2")
    e("v_lshrrev_b32 v4, 3, v0")
    e("v_lshl_add_u32 v2, v4, 3, v2")
    e("v_add_u32 v2, s26, v2")
    e(f"buffer_store_short v32, v2, s[20:23], 0 offen offset:{16*32}")
    e(f"buffer_store_short v32, v2, s[20:23], 0 offen offset:{20*32}")
    out.append("KR_END:")
    e("s_endpgm")
    return name


def k2():
    name = "k2_attnout_kernel"
    kernel_begin(name)
    e("s_cmp_ge_u32 s2, 256")
    e("s_cbranch_scc1 K2_END")
    e("s_load_dwordx2 s[4:5], s[0:1], 0")
    e("s_load_dwordx2 s[6:7], s[0:1], 16")
    e("s_load_dwordx2 s[8:9], s[0:1], 72")
    common_ids()
    wg_map()
    e("s_waitcnt lgkmcnt(0)")
    srd(12, 4, S * D * 2)
    srd(16, 6, D * D * 2)
    srd(20, 8, WS_END)
    stamp_init()
    stamp(2, 0)
    A = 16
    ACC = 144
    DS = [160, 176, 192]
    BF = [208, 212]
    XR = 216
    T = 224
    e("s_lshl_b32 s27, s25, 7")
    e("s_lshl_b32 s28, s24, 5")
    e("s_add_u32 s27, s27, s28")
    e("v_add_u32 v8, s27, v2")
    e("v_lshrrev_b32 v10, 2, v1")
    e("s_lshl_b32 s28, s24, 7")
    e("v_add_u32 v10, s28, v10")
    e("v_lshlrev_b32 v10, 10, v10")
    e("v_and_b32 v11, 3, v1")
    e("v_lshl_add_u32 v10, v11, 4, v10")
    e("s_lshl_b32 s29, s26, 6")
    e("v_add_u32 v10, s29, v10")
    e("s_lshl_b32 s30, s24, 13")
    for i in range(8):
        e(f"s_mov_b32 s31, {i*16384}")
        e(f"s_add_u32 m0, s30, {i*1024}")
        e("s_nop 0")
        e("buffer_load_dwordx4 v10, s[16:19], s31 offen lds")
    e("v_lshlrev_b32 v11, 5, v2")
    e("v_lshl_add_u32 v11, v3, 4, v11")
    e(f"v_add_u32 v11, 0x{WS_KVZ:x}, v11")
    e("s_lshl_b32 s27, s25, 2")
    e("s_add_u32 s27, s27, s24")
    e("s_lshl_b32 s27, s27, 15")
    e("v_lshlrev_b32 v14, 4, v1")
    e("v_add_u32 v14, s27, v14")
    e("v_mov_b32 v9, v14")
    for h in range(32):
        if h % 4 == 0 and h:
            e("v_add_u32 v11, 0x1000, v11")
            e("v_add_u32 v9, 0x1000, v9")
        if h == 24:
            e("s_waitcnt vmcnt(32)")
        e(f"buffer_load_dwordx4 a[{4*h}:{4*h+3}], v11, s[20:23], 0 offen offset:{(h%4)*1024}")
        e(f"buffer_load_dwordx4 v[{A+4*h}:{A+4*h+3}], v9, s[20:23], 0 offen offset:{WS_PQ + (h%4)*1024}")
    e("v_lshlrev_b32 v9, 10, v8")
    e("v_lshl_add_u32 v9, v3, 3, v9")
    e("s_lshl_b32 s29, s26, 6")
    e("v_add_u32 v9, s29, v9")
    for q in range(4):
        e(f"buffer_load_dwordx2 v[{XR+2*q}:{XR+2*q+1}], v9, s[12:15], 0 offen offset:{16*q}")
    tr_base(12, True)

    def omfma(h):
        d = DS[h % 3]
        e(f"v_mfma_f32_32x32x16_bf16 v[{d}:{d+15}], a[{4*h}:{4*h+3}], v[{A+4*h}:{A+4*h+3}], 0")

    def oproc(h):
        d = DS[h % 3]
        ops = [f"v_add_f32 v{T}, 0x358637bd, v{d+8}",
               f"v_rcp_f32 v{T}, v{T}",
               "s_nop 0"]
        for m in range(8):
            ops.append(f"v_mul_f32 v{d+m}, v{d+m}, v{T}")
        for m in range(4):
            ops.append(f"v_cvt_pk_bf16_f32 v{A+4*h+m}, v{d+2*m}, v{d+2*m+1}")
        return ops

    def reads(j, buf):
        b = BF[buf]
        e(f"ds_read_b64_tr_b16 v[{b}:{b+1}], v12 offset:{j*1024}")
        e(f"ds_read_b64_tr_b16 v[{b+2}:{b+3}], v12 offset:{j*1024+512}")

    stamp(2, 1)
    e("s_waitcnt vmcnt(4)")
    e("s_barrier")
    stamp(2, 2)
    omfma(0)
    omfma(1)
    reads(0, 0)
    e("s_nop 7")
    e("s_nop 7")
    for op in oproc(0):
        e(op)
    for j in range(32):
        b = BF[j & 1]
        if j + 2 < 32:
            omfma(j + 2)
        if j + 1 < 32:
            reads(j + 1, (j + 1) & 1)
            for op in oproc(j + 1):
                e(op)
            e("s_waitcnt lgkmcnt(2)")
        else:
            e("s_waitcnt lgkmcnt(0)")
            e("s_nop 1")
        cc = "0" if j == 0 else f"v[{ACC}:{ACC+15}]"
        e(f"v_mfma_f32_32x32x16_bf16 v[{ACC}:{ACC+15}], v[{b}:{b+3}], v[{A+4*j}:{A+4*j+3}], {cc}")
    e("s_nop 7")
    e("s_nop 7")
    stamp(2, 3)
    e("s_waitcnt vmcnt(0)")
    for q in range(4):
        for i in range(2):
            x = XR + 2 * q + i
            e(f"v_lshlrev_b32 v{T}, 16, v{x}")
            e(f"v_and_b32 v{T+1}, 0xffff0000, v{x}")
            e(f"v_add_f32 v{T}, v{T}, v{ACC+4*q+2*i}")
            e(f"v_add_f32 v{T+1}, v{T+1}, v{ACC+4*q+2*i+1}")
            e(f"v_cvt_pk_bf16_f32 v{x}, v{T}, v{T+1}")
    e("s_lshl_b32 s29, s26, 11")
    e(f"s_add_u32 s29, s29, 0x{WS_H:x}")
    e("v_add_u32 v14, s29, v14")
    for t in range(2):
        e(f"buffer_store_dwordx4 v[{XR+4*t}:{XR+4*t+3}], v14, s[20:23], 0 offen offset:{1024*t}")
    stamp(2, 4)
    out.append("K2_END:")
    e("s_endpgm")
    return name


def k3():
    name = "k3_gateup_kernel"
    kernel_begin(name)
    e("s_cmp_ge_u32 s2, 240")
    e("s_cbranch_scc1 K3_END")
    e("s_load_dwordx2 s[4:5], s[0:1], 32")
    e("s_load_dwordx2 s[6:7], s[0:1], 40")
    e("s_load_dwordx2 s[8:9], s[0:1], 72")
    common_ids()
    wg_map()
    e("s_waitcnt lgkmcnt(0)")
    srd(12, 4, D * F * 2)
    srd(16, 6, D * F * 2)
    srd(20, 8, WS_END)
    stamp_init()
    stamp(3, 0)
    A = 16
    ACC = 144
    T = 240
    DEPTH = 2
    BF = [0, 24]
    R = 6
    SLOT = 24576
    vm = Lg("vmcnt", 63)
    lg = Lg()
    e("s_lshl_b32 s27, s25, 2")
    e("s_add_u32 s27, s27, s24")
    e("s_lshl_b32 s28, s27, 15")
    e(f"s_add_u32 s28, s28, 0x{WS_H:x}")
    e("v_lshlrev_b32 v9, 4, v1")
    e("v_add_u32 v9, s28, v9")
    for j in range(32):
        if j % 4 == 0 and j:
            e("v_add_u32 v9, 0x1000, v9")
        e(f"buffer_load_dwordx4 v[{A+4*j}:{A+4*j+3}], v9, s[20:23], 0 offen offset:{(j%4)*1024}")
        vm.issue("A")
    e("s_movk_i32 s29, 2752")
    e("s_mov_b32 s28, 43691")
    e("s_mul_i32 s32, s26, 192")
    e("s_lshl_b32 s33, s24, 4")
    for i in range(3):
        d = 248 + i
        e(f"v_add_u32 v14, {64*i}, v1")
        e("v_mul_lo_u32 v15, v14, s28")
        e("v_lshrrev_b32 v15, 19, v15")
        e("v_mul_u32_u24 v8, 12, v15")
        e("v_sub_u32 v14, v14, v8")
        e("v_add_u32 v15, s33, v15")
        e(f"v_mul_lo_u32 v{d}, v15, s29")
        e(f"v_lshl_add_u32 v{d}, v14, 4, v{d}")
        e(f"v_add_u32 v{d}, s32, v{d}")
    e("s_mul_i32 s30, s24, 3072")

    def dma_ops(st):
        ops = []
        for p in range(2):
            for i in range(3):
                ops.append(f"s_mov_b32 s31, {st*64*2752}")
                ops.append(f"s_add_u32 m0, s30, {(st % R)*SLOT + p*12288 + i*1024}")
                ops.append("s_nop 0")
                ops.append(("V", f"buffer_load_dwordx4 v{248+i}, s[{12+4*p}:{15+4*p}], s31 offen lds", ("B", st)))
        return ops

    def emit(op):
        if isinstance(op, tuple):
            e(op[1])
            (vm if op[0] == "V" else lg).issue(op[2])
        else:
            e(op)

    e("v_bfe_u32 v5, v1, 2, 2")
    e("v_and_b32 v6, 3, v1")
    e("v_bfe_u32 v7, v1, 4, 1")
    e("v_lshl_add_u32 v12, v3, 2, v5")
    e("v_mul_u32_u24 v12, 192, v12")
    e("v_lshl_add_u32 v12, v7, 5, v12")
    e("v_lshl_add_u32 v12, v6, 3, v12")
    e("v_add_u32 v13, 0xc000, v12")
    e("v_add_u32 v11, 0x18000, v12")
    for op in dma_ops(0):
        emit(op)
    stamp(3, 1)
    vm.wait({"A"})
    stamp(3, 2)
    RS, NB = 14, 15
    s0, s1, q0, q1, ones = T, T + 1, T + 2, T + 3, T + 4
    e(f"v_mov_b32 v{ones}, 0x3f803f80")
    for r in (s0, s1, q0, q1):
        e(f"v_mov_b32 v{r}, 0")
    main = []
    for i in range(128):
        main.append(f"v_dot2c_f32_bf16 v{s0 if i % 2 == 0 else s1}, v{A+i}, v{ones}")
        main.append(f"v_dot2c_f32_bf16 v{q0 if i % 2 == 0 else q1}, v{A+i}, v{A+i}")
    spread(main, dma_ops(1) + dma_ops(2) + dma_ops(3), emit)
    e("s_nop 3")
    e(f"v_add_f32 v{s0}, v{s0}, v{s1}")
    e(f"v_add_f32 v{q0}, v{q0}, v{q1}")
    e(f"v_mov_b32 v{s1}, v{s0}")
    e(f"v_mov_b32 v{q1}, v{q0}")
    e("s_nop 1")
    e(f"v_permlane32_swap_b32 v{s0}, v{s1}")
    e(f"v_permlane32_swap_b32 v{q0}, v{q1}")
    e("s_nop 1")
    e(f"v_add_f32 v{s0}, v{s0}, v{s1}")
    e(f"v_add_f32 v{q0}, v{q0}, v{q1}")
    e(f"v_mul_f32 v{s0}, 0x3b000000, v{s0}")
    e(f"v_mul_f32 v{q0}, 0x3b000000, v{q0}")
    e(f"v_fma_f32 v{q0}, -v{s0}, v{s0}, v{q0}")
    e(f"v_max_f32 v{q0}, 0, v{q0}")
    e(f"v_add_f32 v{q0}, 0x3727c5ac, v{q0}")
    e(f"v_rsq_f32 v{RS}, v{q0}")
    e("s_nop 0")
    e(f"v_mul_f32 v{NB}, v{s0}, v{RS}")
    e(f"v_sub_f32 v{NB}, 0, v{NB}")
    for r in range(4):
        for op in ln_apply_ops(A + r, RS, NB, T):
            e(op)

    def reads(j):
        st, t = j // 4, j % 4
        sl = st % R
        va = [12, 13, 11][sl // 2]
        base = (sl % 2) * SLOT + t * 16 * 192
        b = BF[j % DEPTH]
        for p in range(2):
            for u in range(3):
                o = base + p * 12288 + u * 64
                k = (p * 3 + u) * 4
                e(f"ds_read_b64_tr_b16 a[{b+k}:{b+k+1}], v{va} offset:{o}")
                lg.issue(("b", j))
                e(f"ds_read_b64_tr_b16 a[{b+k+2}:{b+k+3}], v{va} offset:{o+8*192}")
                lg.issue(("b", j))

    def stage_wait(st):
        vm.wait({("B", st)})
        e("s_barrier")

    stamp(3, 3)
    for j in range(-(DEPTH - 1), 32):
        jr = j + DEPTH - 1
        if jr < 32:
            if jr % 4 == 0:
                stage_wait(jr // 4)
            reads(jr)
        if j < 0:
            continue
        lg.wait({("b", j)})
        b = BF[j % DEPTH]
        a = f"v[{A+4*j}:{A+4*j+3}]"
        main = []
        for x in range(6):
            cc = "0" if j == 0 else f"v[{ACC+16*x}:{ACC+16*x+15}]"
            main.append(f"v_mfma_f32_32x32x16_bf16 v[{ACC+16*x}:{ACC+16*x+15}], a[{b+4*x}:{b+4*x+3}], {a}, {cc}")
        fill = []
        if j + 1 < 32:
            for r in range(4):
                fill += ln_apply_ops(A + 4 * (j + 1) + r, RS, NB, T + 2 * (r & 1))
        st, t = j // 4, j % 4
        if st + 4 < 8 and t in (1, 2):
            ops = dma_ops(st + 4)
            fill += ops[:12] if t == 1 else ops[12:]
        spread(main, fill, emit)
    e("s_nop 7")
    e("s_nop 7")
    stamp(3, 4)
    e("s_mul_i32 s28, s27, 88064")
    e("s_mul_i32 s29, s26, 6144")
    e("s_add_u32 s28, s28, s29")
    e(f"s_add_u32 s28, s28, 0x{WS_HH:x}")
    e("v_lshlrev_b32 v9, 4, v1")
    e("v_add_u32 v9, s28, v9")
    for u in range(3):
        if u == 1:
            e("s_cmp_ge_u32 s26, 14")
            e("s_cbranch_scc1 K3_END")
        g0, u0 = ACC + 16 * u, ACC + 48 + 16 * u
        for i in range(16):
            e(f"v_mul_f32 v{g0+i}, v{g0+i}, v{u0+i}")
        for q in range(8):
            e(f"v_cvt_pk_bf16_f32 v{u0+q}, v{g0+2*q}, v{g0+2*q+1}")
        e(f"s_movk_i32 s31, {2048*u}")
        for tt in range(2):
            e(f"buffer_store_dwordx4 v[{u0+4*tt}:{u0+4*tt+3}], v9, s[20:23], s31 offen offset:{1024*tt}")
    stamp(3, 5)
    out.append("K3_END:")
    e("s_endpgm")
    return name


def k4():
    name = NAME + "_kernel"
    kernel_begin(name)
    e("s_cmp_ge_u32 s2, 256")
    e("s_cbranch_scc1 K4_END")
    e("s_load_dwordx2 s[4:5], s[0:1], 48")
    e("s_load_dwordx2 s[6:7], s[0:1], 56")
    e("s_load_dwordx2 s[8:9], s[0:1], 72")
    common_ids()
    e("s_and_b32 s25, s2, 7")
    e("s_lshl_b32 s25, s25, 2")
    e("s_bfe_u32 s26, s2, 0x20003")
    e("s_or_b32 s25, s25, s26")
    e("s_lshr_b32 s26, s2, 5")
    e("s_and_b32 s34, s24, 1")
    e("s_lshr_b32 s35, s24, 1")
    e("s_waitcnt lgkmcnt(0)")
    srd(12, 4, F * D * 2)
    srd(16, 6, S * D * 2)
    srd(20, 8, WS_END)
    stamp_init()
    stamp(4, 0)
    NK = F // 16
    SL = 8
    NST = (NK + SL - 1) // SL
    R = 4
    SLOT = 32768
    DEPTH = 4
    ACC = 144
    XR = 168
    T = 176
    AFR = 0
    BFR = 16
    vm = Lg("vmcnt", 63)
    lg = Lg()
    e("s_lshl_b32 s27, s25, 1")
    e("s_add_u32 s27, s27, s34")
    e("s_lshl_b32 s28, s27, 15")
    e("s_lshl_b32 s29, s26, 12")
    e("s_add_u32 s28, s28, s29")
    e("s_lshl_b32 s29, s35, 11")
    e("s_add_u32 s28, s28, s29")
    e(f"s_add_u32 s28, s28, 0x{WS_H:x}")
    e("v_lshlrev_b32 v14, 4, v1")
    e("v_add_u32 v14, s28, v14")
    for t in range(2):
        e(f"buffer_load_dwordx4 v[{XR+4*t}:{XR+4*t+3}], v14, s[20:23], 0 offen offset:{1024*t}")
        vm.issue("R")
    e("s_mul_i32 s28, s27, 88064")
    e("s_lshl_b32 s29, s35, 12")
    e("s_add_u32 s28, s28, s29")
    e(f"s_add_u32 s28, s28, 0x{WS_HH:x}")
    e("v_lshlrev_b32 v15, 4, v1")
    e("v_add_u32 v15, s28, v15")
    e("s_lshl_b32 s36, s34, 13")
    e("s_lshl_b32 s29, s35, 12")
    e("s_add_u32 s36, s36, s29")
    e("v_lshrrev_b32 v10, 3, v1")
    e("v_and_b32 v11, 7, v1")
    e("v_bfe_u32 v8, v10, 1, 1")
    e("v_lshlrev_b32 v8, 2, v8")
    e("v_xor_b32 v11, v11, v8")
    e("s_lshl_b32 s28, s24, 5")
    e("v_add_u32 v10, s28, v10")
    e("v_lshlrev_b32 v10, 10, v10")
    e("v_lshl_add_u32 v10, v11, 4, v10")
    e("s_lshl_b32 s29, s26, 7")
    e("v_add_u32 v10, s29, v10")
    e("s_lshl_b32 s30, s24, 12")
    e("s_add_u32 s30, s30, 16384")

    def dma_ops(st):
        ops = []
        sl = (st % R) * SLOT
        for i in range(4):
            ops.append(f"s_mov_b32 s31, {st*SL*1024 + i*1024}")
            ops.append(f"s_add_u32 m0, s36, {sl + i*1024}")
            ops.append("s_nop 0")
            ops.append(("V", "buffer_load_dwordx4 v15, s[20:23], s31 offen lds", ("B", st)))
            ops.append(f"s_mov_b32 s31, {(st*128 + 8*i)*1024}")
            ops.append(f"s_add_u32 m0, s30, {sl + i*1024}")
            ops.append("s_nop 0")
            ops.append(("V", "buffer_load_dwordx4 v10, s[12:15], s31 offen lds", ("B", st)))
        return ops

    def emit(op):
        if isinstance(op, tuple):
            e(op[1])
            (vm if op[0] == "V" else lg).issue(op[2])
        else:
            e(op)

    for st in range(3):
        for op in dma_ops(st):
            emit(op)
    e("v_bfe_u32 v5, v1, 2, 2")
    e("v_and_b32 v6, 3, v1")
    e("v_bfe_u32 v7, v1, 4, 1")
    e("v_lshl_add_u32 v12, v3, 2, v5")
    e("v_lshlrev_b32 v12, 7, v12")
    e("v_lshrrev_b32 v8, 1, v5")
    e("v_xor_b32 v8, s35, v8")
    e("v_lshl_add_u32 v12, v8, 6, v12")
    e("v_lshl_add_u32 v12, v7, 5, v12")
    e("v_lshl_add_u32 v12, v6, 3, v12")
    e("v_add_u32 v12, 0x4000, v12")
    e("v_add_u32 v13, 0x10000, v12")
    e("s_lshl_b32 s28, s34, 13")
    e("v_lshlrev_b32 v4, 4, v1")
    e("v_add_u32 v4, s28, v4")
    e("v_add_u32 v9, 0x10000, v4")
    stamp(4, 1)

    def reads(j):
        st, t = j // SL, j % SL
        sl = st % R
        hi = sl >= 2
        base = (sl % 2) * SLOT
        af = AFR + 4 * (j % DEPTH)
        bf = BFR + 4 * (j % DEPTH)
        e(f"ds_read_b128 a[{af}:{af+3}], v{9 if hi else 4} offset:{base + t*1024}")
        lg.issue(("b", j))
        e(f"ds_read_b64_tr_b16 a[{bf}:{bf+1}], v{13 if hi else 12} offset:{base + t*2048}")
        lg.issue(("b", j))
        e(f"ds_read_b64_tr_b16 a[{bf+2}:{bf+3}], v{13 if hi else 12} offset:{base + t*2048 + 1024}")
        lg.issue(("b", j))

    for j in range(-(DEPTH - 1), NK):
        jr = j + DEPTH - 1
        if jr < NK:
            if jr % SL == 0:
                vm.wait({("B", jr // SL)})
                e("s_barrier")
            reads(jr)
        if j < 0:
            continue
        lg.wait({("b", j)})
        af = AFR + 4 * (j % DEPTH)
        bf = BFR + 4 * (j % DEPTH)
        cc = "0" if j == 0 else f"v[{ACC}:{ACC+15}]"
        e(f"v_mfma_f32_32x32x16_bf16 v[{ACC}:{ACC+15}], a[{bf}:{bf+3}], a[{af}:{af+3}], {cc}")
        st, t = j // SL, j % SL
        if t >= 5:
            sd, part = st + 3, t - 5
        elif t == 0 and st > 0:
            sd, part = st + 2, 3
        else:
            sd, part = None, None
        if sd is not None and sd < NST:
            ops = dma_ops(sd)
            for op in ops[part * 8:part * 8 + 8]:
                emit(op)
    e("s_nop 7")
    e("s_nop 7")
    stamp(4, 3)
    vm.wait({"R"})
    for q in range(4):
        for i in range(2):
            x = XR + 2 * q + i
            e(f"v_lshlrev_b32 v{T}, 16, v{x}")
            e(f"v_and_b32 v{T+1}, 0xffff0000, v{x}")
            e(f"v_add_f32 v{T}, v{T}, v{ACC+4*q+2*i}")
            e(f"v_add_f32 v{T+1}, v{T+1}, v{ACC+4*q+2*i+1}")
            e(f"v_cvt_pk_bf16_f32 v{x}, v{T}, v{T+1}")
    e("s_lshl_b32 s28, s27, 5")
    e("v_add_u32 v8, s28, v2")
    e("v_lshlrev_b32 v9, 10, v8")
    e("v_lshl_add_u32 v9, v3, 3, v9")
    e("s_lshl_b32 s29, s26, 7")
    e("s_lshl_b32 s28, s35, 6")
    e("s_add_u32 s29, s29, s28")
    e("v_add_u32 v9, s29, v9")
    for q in range(4):
        e(f"buffer_store_dwordx2 v[{XR+2*q}:{XR+2*q+1}], v9, s[16:19], 0 offen offset:{16*q}")
    stamp(4, 4)
    out.append("K4_END:")
    e("s_endpgm")
    return name


def main():
    hdr = open("cdna_kernels/%s.s.ref" % NAME).read().splitlines()
    for l in hdr:
        if "@launch" in l and "grid=(4096" in l:
            break
        out.append(l.replace("@launch", "launch"))
    out.append("; @launch kernel=k1_qkv_kernel grid=(256,1,1) block=(256,1,1) lds=131072")
    out.append("; @launch kernel=kr_reduce_kernel grid=(32,1,1) block=(256,1,1) lds=0")
    out.append("; @launch kernel=k2_attnout_kernel grid=(256,1,1) block=(256,1,1) lds=32768")
    out.append("; @launch kernel=k3_gateup_kernel grid=(240,1,1) block=(256,1,1) lds=147456")
    out.append(f"; @launch kernel={NAME}_kernel grid=(256,1,1) block=(256,1,1) lds=131072")
    out.append('.amdgcn_target "amdgcn-amd-amdhsa--gfx950"')
    out.append(".text")
    n1 = k1()
    nr = kr()
    n2 = k2()
    n3 = k3()
    n4 = k4()
    out.append('.section .rodata,"a"')
    out.append(".p2align 6")
    kdesc(n1, 320, 256)
    out.append(".p2align 6")
    kdesc(nr, 64, 64)
    out.append(".p2align 6")
    kdesc(n2, 384, 256)
    out.append(".p2align 6")
    kdesc(n3, 320, 256)
    out.append(".p2align 6")
    kdesc(n4, 320, 256)
    path = sys.argv[1] if len(sys.argv) > 1 else "cdna_kernels/%s.s" % NAME
    open(path, "w").write("\n".join(out) + "\n")


main()
```

```python
import sys, os

NAME = "sequential_preLN__linear_attn_block__glu_gated_bilinear__prompt"
S, D, F = 2048, 512, 1376
WS_PQ = 0x000000
WS_PART = 0x200000
WS_KVZ = 0x300000
WS_H = 0x400000
WS_HH = 0x600000
WS_END = 0x600000 + S * F * 2
STAMP = len(sys.argv) > 2 and sys.argv[2] == "stamp"
WS_STAMP = 0xF000000

out = []


def e(s=""):
    out.append("    " + s if s and not s.endswith(":") else s)


def srd(base, ptr, size):
    e(f"s_mov_b32 s{base}, s{ptr}")
    e(f"s_mov_b32 s{base+1}, s{ptr+1}")
    e(f"s_mov_b32 s{base+2}, 0x{size:x}")
    e(f"s_mov_b32 s{base+3}, 0x00020000")


def kernel_begin(name):
    out.append(".p2align 8")
    out.append(f".globl {name}")
    out.append(f".type {name},@function")
    out.append(f"{name}:")


def kdesc(name, vgpr, accum, sgpr=96):
    out.append(".p2align 6")
    out.append(f".amdhsa_kernel {name}")
    out.append(f"  .amdhsa_next_free_vgpr {vgpr}")
    out.append(f"  .amdhsa_next_free_sgpr {sgpr}")
    out.append(f"  .amdhsa_accum_offset {accum}")
    out.append("  .amdhsa_group_segment_fixed_size 0")
    out.append("  .amdhsa_kernarg_size 80")
    out.append("  .amdhsa_user_sgpr_count 2")
    out.append("  .amdhsa_user_sgpr_kernarg_segment_ptr 1")
    out.append("  .amdhsa_system_sgpr_workgroup_id_x 1")
    out.append(".end_amdhsa_kernel")


SV = [14, 15]


def stamp(kidx, n):
    if not STAMP:
        return
    a, b = SV
    e("s_memtime s[60:61]")
    e("s_memrealtime s[68:69]")
    e("s_waitcnt lgkmcnt(0)")
    e(f"v_mov_b32 v{a}, s60")
    e("s_lshl_b32 s62, s2, 3")
    e("s_add_u32 s62, s62, s24")
    e("s_lshl_b32 s62, s62, 5")
    e(f"s_add_u32 s62, s62, {WS_STAMP + kidx*0x10000}")
    e(f"v_mov_b32 v{b}, s62")
    e(f"buffer_store_dword v{a}, v{b}, s[64:67], 0 offen offset:{n*4}")
    e(f"v_mov_b32 v{a}, s68")
    e(f"buffer_store_dword v{a}, v{b}, s[64:67], 0 offen offset:{24 if n == 0 else 28}")


def stamp_init():
    if STAMP:
        srd(64, 8, 0x10000000)


def common_ids():
    e("v_and_b32 v1, 63, v0")
    e("v_lshrrev_b32 v4, 6, v0")
    e("s_nop 0")
    e("v_readfirstlane_b32 s24, v4")
    e("v_and_b32 v2, 31, v1")
    e("v_lshrrev_b32 v3, 5, v1")
    e("s_and_b32 s34, s24, 3")
    e("s_lshr_b32 s35, s24, 2")


def wg_map():
    e("s_and_b32 s25, s2, 7")
    e("s_lshl_b32 s25, s25, 1")
    e("s_bfe_u32 s26, s2, 0x10003")
    e("s_or_b32 s25, s25, s26")
    e("s_lshr_b32 s26, s2, 4")


def tr_parts():
    e("v_bfe_u32 v5, v1, 2, 2")
    e("v_and_b32 v6, 3, v1")
    e("v_bfe_u32 v7, v1, 4, 1")


def ln_apply_ops(reg, rs, nb, t0):
    lo, hi = t0, t0 + 1
    return [
        f"v_lshlrev_b32 v{lo}, 16, v{reg}",
        f"v_and_b32 v{hi}, 0xffff0000, v{reg}",
        f"v_fma_f32 v{lo}, v{lo}, v{rs}, v{nb}",
        f"v_fma_f32 v{hi}, v{hi}, v{rs}, v{nb}",
        f"v_cvt_pk_bf16_f32 v{reg}, v{lo}, v{hi}",
    ]


def phi_ops(regs, tmp):
    for i, r in enumerate(regs):
        e(f"v_mul_f32 v{tmp+i}, 0x3fb8aa3b, v{r}")
    for i, r in enumerate(regs):
        e(f"v_min_f32 v{tmp+i}, 0, v{tmp+i}")
    for i, r in enumerate(regs):
        e(f"v_exp_f32 v{tmp+i}, v{tmp+i}")
    for i, r in enumerate(regs):
        e(f"v_max_f32 v{r}, 0, v{r}")
    for i, r in enumerate(regs):
        e(f"v_add_f32 v{tmp+i}, 0x358637bd, v{tmp+i}")
    for i, r in enumerate(regs):
        e(f"v_add_f32 v{r}, v{r}, v{tmp+i}")


class Cnt:
    def __init__(self, name, cap):
        self.q, self.name, self.cap = [], name, cap

    def issue(self, tag):
        self.q.append(tag)

    def wait(self, tags):
        idx = -1
        for i, t in enumerate(self.q):
            if t in tags:
                idx = i
        if idx < 0:
            return
        n = min(len(self.q) - 1 - idx, self.cap)
        e(f"s_waitcnt {self.name}({n})")
        self.q = self.q[len(self.q) - n:] if n else []


class Ctx:
    def __init__(self):
        self.vm = Cnt("vmcnt", 63)
        self.lg = Cnt("lgkmcnt", 15)

    def emit(self, op):
        if isinstance(op, tuple):
            e(op[1])
            (self.vm if op[0] == "V" else self.lg).issue(op[2])
        else:
            e(op)

    def emits(self, ops):
        for op in ops:
            self.emit(op)

    def spread(self, main, fill):
        n = len(main)
        k = 0
        for i, mm in enumerate(main):
            e(mm)
            tgt = (len(fill) * (i + 1)) // n
            while k < tgt:
                self.emit(fill[k])
                k += 1


def merge(a, b):
    o = []
    i = j = 0
    while i < len(a) or j < len(b):
        if j >= len(b) or (i < len(a) and i * len(b) <= j * len(a)):
            o.append(a[i]); i += 1
        else:
            o.append(b[j]); j += 1
    return o


def finish_stats(sm, qm, rs, nb, n):
    for m in range(n):
        e(f"v_mul_f32 v{sm+m}, 0x3b000000, v{sm+m}")
        e(f"v_mul_f32 v{qm+m}, 0x3b000000, v{qm+m}")
    for m in range(n):
        e(f"v_fma_f32 v{qm+m}, -v{sm+m}, v{sm+m}, v{qm+m}")
    for m in range(n):
        e(f"v_max_f32 v{qm+m}, 0, v{qm+m}")
    for m in range(n):
        e(f"v_add_f32 v{qm+m}, 0x3727c5ac, v{qm+m}")
    for m in range(n):
        e(f"v_rsq_f32 v{rs+m}, v{qm+m}")
    e("s_nop 0")
    for m in range(n):
        e(f"v_mul_f32 v{nb+m}, v{sm+m}, v{rs+m}")
    for m in range(n):
        e(f"v_sub_f32 v{nb+m}, 0, v{nb+m}")


def k1():
    global SV
    name = "k1_qkv_kernel"
    kernel_begin(name)
    cx = Ctx()
    SV = [174, 175]
    e("s_cmp_ge_u32 s2, 256")
    e("s_cbranch_scc1 K1_END")
    e("s_load_dwordx2 s[4:5], s[0:1], 0")
    e("s_load_dwordx2 s[6:7], s[0:1], 8")
    e("s_load_dwordx2 s[8:9], s[0:1], 72")
    e("s_load_dwordx2 s[10:11], s[0:1], 16")
    common_ids()
    wg_map()
    e("s_waitcnt lgkmcnt(0)")
    srd(12, 4, S * D * 2)
    srd(16, 6, D * 3 * D * 2)
    srd(20, 8, WS_END)
    srd(44, 10, D * D * 2)
    stamp_init()
    stamp(0, 0)
    A = 16
    ACQ, ACK, ACV = 80, 96, 112
    WA, RA, RSN = 128, 132, 136
    T = 144
    AF = 0
    BFB = 16
    XS = 131072
    e("s_lshl_b32 s27, s25, 7")
    e("s_lshl_b32 s28, s34, 5")
    e("s_add_u32 s27, s27, s28")
    e("v_lshrrev_b32 v8, 3, v1")
    e("v_and_b32 v11, 7, v1")
    e("v_add_u32 v9, s27, v8")
    e("v_lshlrev_b32 v9, 10, v9")
    e("v_lshl_add_u32 v9, v11, 4, v9")
    e("s_lshl_b32 s28, s35, 7")
    e("v_add_u32 v9, s28, v9")
    for cc in range(4):
        for m in range(4):
            e(f"s_mov_b32 s31, {m*8192}")
            r = A + (m * 4 + cc) * 4
            cx.emit(("V", f"buffer_load_dwordx4 v[{r}:{r+3}], v9, s[12:15], s31 offen offset:{256*cc}", "A"))
    e("v_lshrrev_b32 v10, 2, v1")
    e("s_lshl_b32 s28, s24, 4")
    e("v_add_u32 v10, s28, v10")
    e("s_movk_i32 s29, 3072")
    e("v_mul_lo_u32 v10, v10, s29")
    e("v_and_b32 v14, 3, v1")
    e("v_lshl_add_u32 v10, v14, 4, v10")
    e("s_lshl_b32 s29, s26, 6")
    e("v_add_u32 v10, s29, v10")
    e("s_lshl_b32 s30, s24, 10")

    def dma(qq):
        ops = []
        for p in range(3):
            ops.append(f"s_mov_b32 s31, {p*1024 + 128*qq*3072}")
            ops.append(f"s_add_u32 m0, s30, {p*32768 + 128*qq*64}")
            ops.append("s_nop 0")
            ops.append(("V", "buffer_load_dwordx4 v10, s[16:19], s31 offen lds", ("B", qq)))
        return ops
    for qq in range(2):
        cx.emits(dma(qq))
    tr_parts()
    e("v_lshl_add_u32 v12, v3, 3, v5")
    e("v_lshlrev_b32 v12, 6, v12")
    e("v_lshl_add_u32 v12, v7, 5, v12")
    e("v_lshl_add_u32 v12, v6, 3, v12")
    e("v_add_u32 v13, 0x10000, v12")
    e("s_lshl_b32 s28, s24, 12")
    e("s_add_u32 s28, s28, 98304")
    for m in range(4):
        e(f"v_add_u32 v14, {8*m}, v8")
        e("v_bfe_u32 v15, v14, 1, 3")
        e("v_xor_b32 v15, v15, v11")
        e("v_lshlrev_b32 v15, 4, v15")
        e(f"v_lshl_add_u32 v{WA+m}, v14, 7, v15")
        e(f"v_add_u32 v{WA+m}, s28, v{WA+m}")
    for t in range(4):
        e(f"v_add_u32 v14, {2*t}, v3")
        e("v_bfe_u32 v15, v2, 1, 3")
        e("v_xor_b32 v15, v15, v14")
        e("v_lshlrev_b32 v15, 4, v15")
        e(f"v_lshl_add_u32 v{RA+t}, v2, 7, v15")
        e(f"v_add_u32 v{RA+t}, s28, v{RA+t}")
    stamp(0, 1)
    cx.vm.wait({"A"})
    stamp(0, 2)
    SM, QM, ONE = T, T + 4, T + 8
    e(f"v_mov_b32 v{ONE}, 0x3f803f80")
    for m in range(4):
        e(f"v_mov_b32 v{SM+m}, 0")
        e(f"v_mov_b32 v{QM+m}, 0")
    for cc in range(4):
        for r in range(4):
            for m in range(4):
                reg = A + (m * 4 + cc) * 4 + r
                e(f"v_dot2c_f32_bf16 v{SM+m}, v{reg}, v{ONE}")
                e(f"v_dot2c_f32_bf16 v{QM+m}, v{reg}, v{reg}")
    e("s_nop 3")
    for dpp in ("quad_perm:[1,0,3,2]", "quad_perm:[2,3,0,1]", "row_half_mirror"):
        for i in range(8):
            e(f"v_add_f32_dpp v{T+i}, v{T+i}, v{T+i} {dpp} row_mask:0xf bank_mask:0xf")
        e("s_nop 1")
    e("s_lshl_b32 s28, s24, 8")
    e(f"s_add_u32 s28, s28, {XS}")
    e("v_lshlrev_b32 v14, 3, v8")
    e("v_add_u32 v14, s28, v14")
    e("s_xor_b32 s28, s28, 0x400")
    e("v_lshlrev_b32 v15, 3, v8")
    e("v_add_u32 v15, s28, v15")
    for m in range(4):
        e(f"v_mov_b32 v{T+10+2*m}, v{SM+m}")
        e(f"v_mov_b32 v{T+11+2*m}, v{QM+m}")
    for m in range(4):
        e(f"ds_write_b64 v14, v[{T+10+2*m}:{T+11+2*m}] offset:{64*m}")
    e("s_waitcnt lgkmcnt(0)")
    e("s_barrier")
    for m in range(4):
        e(f"ds_read_b64 v[{T+10+2*m}:{T+11+2*m}], v15 offset:{64*m}")
    e("s_waitcnt lgkmcnt(0)")
    for m in range(4):
        e(f"v_add_f32 v{SM+m}, v{SM+m}, v{T+10+2*m}")
        e(f"v_add_f32 v{QM+m}, v{QM+m}, v{T+11+2*m}")
    finish_stats(SM, QM, RSN, RSN + 4, 4)

    def nw_ops(cc, m):
        ops = []
        base = A + (m * 4 + cc) * 4
        for r in range(4):
            ops += ln_apply_ops(base + r, RSN + m, RSN + 4 + m, T + 20 + 2 * (r & 1))
        ops.append(("L", f"ds_write_b128 v{WA+m}, v[{base}:{base+3}]", ("w", cc)))
        return ops

    def rd_ops(cc):
        return [("L", f"ds_read_b128 a[{AF+4*t}:{AF+4*t+3}], v{RA+t}", ("a", cc)) for t in range(4)]

    e("s_lshl_b32 s28, s35, 12")
    e("v_add_u32 v12, s28, v12")
    e("v_add_u32 v13, s28, v13")

    def reads(n):
        cc, t = n // 4, n % 4
        j0 = 8 * cc + t
        b = BFB + 12 * (n % 2)
        ops = []
        for (va, off, k) in ((12, j0*1024, 0), (12, j0*1024+256, 2), (12, 32768+j0*1024, 4),
                             (12, 32768+j0*1024+256, 6), (13, j0*1024, 8), (13, j0*1024+256, 10)):
            ops.append(("L", f"ds_read_b64_tr_b16 a[{b+k}:{b+k+1}], v{va} offset:{off}", ("b", n)))
        return ops

    def pre(n):
        if n % 4 == 0:
            cx.vm.wait({("B", n // 4)})
            e("s_barrier")

    for m in range(4):
        cx.emits(nw_ops(0, m))
    cx.emits(rd_ops(0))
    stamp(0, 3)
    pre(0)
    cx.emits(reads(0))
    for n in range(16):
        cc, t = n // 4, n % 4
        b = BFB + 12 * (n % 2)
        cx.lg.wait({("b", n), ("a", cc)})
        fill = []
        if n + 1 < 16:
            pre(n + 1)
            fill += reads(n + 1)
        a = f"a[{AF+4*t}:{AF+4*t+3}]"
        cq = "0" if n == 0 else f"v[{ACQ}:{ACQ+15}]"
        ck = "0" if n == 0 else f"v[{ACK}:{ACK+15}]"
        cv = "0" if n == 0 else f"v[{ACV}:{ACV+15}]"
        main = [
            f"v_mfma_f32_32x32x16_bf16 v[{ACQ}:{ACQ+15}], a[{b}:{b+3}], {a}, {cq}",
            f"v_mfma_f32_32x32x16_bf16 v[{ACK}:{ACK+15}], {a}, a[{b+4}:{b+7}], {ck}",
            f"v_mfma_f32_32x32x16_bf16 v[{ACV}:{ACV+15}], {a}, a[{b+8}:{b+11}], {cv}",
        ]
        f2 = []
        if cc + 1 < 4:
            f2 += nw_ops(cc + 1, t)
        if n in (0, 4):
            f2 += dma(2 + n // 4)
        cx.spread(main, merge(fill, f2))
        if t == 3 and cc + 1 < 4:
            cx.emits(rd_ops(cc + 1))
    e("s_lshl_b32 s28, s2, 11")
    e("v_lshlrev_b32 v14, 2, v0")
    e("v_add_u32 v14, s28, v14")
    e("buffer_load_dword v13, v14, s[44:47], 0 offen")
    e("s_nop 7")
    e("s_nop 7")
    stamp(0, 4)
    e("s_barrier")
    e("s_lshl_b32 s28, s24, 13")
    e("v_lshlrev_b32 v14, 4, v1")
    e("v_add_u32 v14, s28, v14")
    e("s_xor_b32 s28, s28, 0x8000")
    e("v_lshlrev_b32 v15, 4, v1")
    e("v_add_u32 v15, s28, v15")
    e("s_cmp_eq_u32 s35, 0")
    e("s_cbranch_scc0 K1_KP1")
    for i in range(4):
        e(f"ds_write_b128 v14, v[{ACQ+4*i}:{ACQ+4*i+3}] offset:{1024*i}")
    e("s_waitcnt lgkmcnt(0)")
    e("s_barrier")
    for i in range(8):
        e(f"ds_read_b128 v[{A+4*i}:{A+4*i+3}], v15 offset:{1024*i}")
    e("s_waitcnt lgkmcnt(0)")
    for i in range(32):
        e(f"v_add_f32 v{ACK+i}, v{ACK+i}, v{A+i}")
    phi_ops([ACK + i for i in range(16)], T)
    PK, VV, ON = A, A + 8, A + 16
    for m in range(8):
        e(f"v_cvt_pk_bf16_f32 v{PK+m}, v{ACK+2*m}, v{ACK+2*m+1}")
        e(f"v_cvt_pk_bf16_f32 v{VV+m}, v{ACV+2*m}, v{ACV+2*m+1}")
    for m in range(4):
        e(f"v_mov_b32 v{ON+m}, 0x3f803f80")
    e("s_nop 1")
    DKV, DZ = ACQ, ACK
    e(f"v_mfma_f32_32x32x16_bf16 v[{DKV}:{DKV+15}], v[{PK}:{PK+3}], v[{VV}:{VV+3}], 0")
    e(f"v_mfma_f32_32x32x16_bf16 v[{DZ}:{DZ+15}], v[{PK}:{PK+3}], v[{ON}:{ON+3}], 0")
    e(f"v_mfma_f32_32x32x16_bf16 v[{DKV}:{DKV+15}], v[{PK+4}:{PK+7}], v[{VV+4}:{VV+7}], v[{DKV}:{DKV+15}]")
    e(f"v_mfma_f32_32x32x16_bf16 v[{DZ}:{DZ+15}], v[{PK+4}:{PK+7}], v[{ON}:{ON+3}], v[{DZ}:{DZ+15}]")
    e("s_mul_i32 s29, s34, 2304")
    e("s_add_u32 s29, s29, 98304")
    e("v_and_b32 v5, 15, v1")
    e("v_lshlrev_b32 v5, 2, v5")
    e("v_lshl_add_u32 v5, v7, 10, v5")
    e("v_lshl_add_u32 v5, v3, 8, v5")
    e("v_add_u32 v5, s29, v5")
    e("v_cmp_ne_u32 vcc, 0, v7")
    e("s_nop 7")
    e("s_nop 7")
    for m in range(8):
        e(f"v_cndmask_b32 v{T+m}, v{DKV+m}, v{DKV+8+m}, vcc")
    for m in range(8):
        e(f"ds_write_b32 v5, v{T+m} offset:{(m&3)*64 + (m>>2)*512}")
    e("v_lshlrev_b32 v6, 4, v3")
    e("v_add_u32 v6, s29, v6")
    e("v_add_u32 v6, 2048, v6")
    e("s_mov_b32 s40, 1")
    e("s_mov_b32 s41, 1")
    e("s_mov_b64 exec, s[40:41]")
    for r in range(16):
        e(f"ds_write_b32 v6, v{DZ+r} offset:{(r&3)*4 + (r>>2)*32}")
    e("s_mov_b64 exec, -1")
    e("s_waitcnt lgkmcnt(0)")
    e("s_barrier")
    e("s_branch K1_SUM")
    out.append("K1_KP1:")
    for i in range(8):
        e(f"ds_write_b128 v14, v[{ACK+4*i}:{ACK+4*i+3}] offset:{1024*i}")
    e("s_waitcnt lgkmcnt(0)")
    e("s_barrier")
    for i in range(4):
        e(f"ds_read_b128 v[{A+4*i}:{A+4*i+3}], v15 offset:{1024*i}")
    e("s_waitcnt lgkmcnt(0)")
    for i in range(16):
        e(f"v_add_f32 v{ACQ+i}, v{ACQ+i}, v{A+i}")
    phi_ops([ACQ + i for i in range(16)], T)
    e("s_lshl_b32 s27, s25, 2")
    e("s_add_u32 s27, s27, s34")
    e("s_lshl_b32 s27, s27, 15")
    e("s_lshl_b32 s29, s26, 11")
    e("s_add_u32 s27, s27, s29")
    e("v_lshlrev_b32 v9, 4, v1")
    e("v_add_u32 v9, s27, v9")
    for q in range(8):
        e(f"v_cvt_pk_bf16_f32 v{T+q}, v{ACQ+2*q}, v{ACQ+2*q+1}")
    for t in range(2):
        e(f"buffer_store_dwordx4 v[{T+4*t}:{T+4*t+3}], v9, s[20:23], 0 offen offset:{WS_PQ + 1024*t}")
    e("s_barrier")
    out.append("K1_SUM:")
    e("v_lshlrev_b32 v5, 2, v0")
    e("v_add_u32 v5, 98304, v5")
    for w in range(4):
        e(f"ds_read_b32 v{T+16+w}, v5 offset:{w*2304}")
    e("v_cmp_gt_u32 vcc, 32, v0")
    e("s_and_saveexec_b64 s[40:41], vcc")
    for w in range(4):
        e(f"ds_read_b32 v{T+20+w}, v5 offset:{w*2304+2048}")
    e("s_mov_b64 exec, s[40:41]")
    e("s_lshl_b32 s29, s25, 5")
    e("s_lshl_b32 s30, s26, 1")
    e("s_add_u32 s29, s29, s30")
    e("s_mul_i32 s29, s29, 1088")
    e(f"s_add_u32 s29, s29, 0x{WS_PART:x}")
    e("v_lshrrev_b32 v6, 8, v0")
    e("v_lshlrev_b32 v6, 6, v6")
    e("v_lshl_add_u32 v6, v0, 2, v6")
    e("v_add_u32 v6, s29, v6")
    e("s_waitcnt lgkmcnt(0)")
    e(f"v_add_f32 v{T+16}, v{T+16}, v{T+17}")
    e(f"v_add_f32 v{T+18}, v{T+18}, v{T+19}")
    e(f"v_add_f32 v{T+16}, v{T+16}, v{T+18}")
    e(f"buffer_store_dword v{T+16}, v6, s[20:23], 0 offen")
    stamp(0, 5)
    e("v_cmp_gt_u32 vcc, 32, v0")
    e("s_and_saveexec_b64 s[40:41], vcc")
    e("s_cbranch_execz K1_END")
    e(f"v_add_f32 v{T+20}, v{T+20}, v{T+21}")
    e(f"v_add_f32 v{T+22}, v{T+22}, v{T+23}")
    e(f"v_add_f32 v{T+20}, v{T+20}, v{T+22}")
    e("v_lshrrev_b32 v6, 4, v0")
    e("v_mul_u32_u24 v6, 1088, v6")
    e("v_and_b32 v7, 15, v0")
    e("v_lshl_add_u32 v6, v7, 2, v6")
    e("v_add_u32 v6, s29, v6")
    e(f"buffer_store_dword v{T+20}, v6, s[20:23], 0 offen offset:1024")
    out.append("K1_END:")
    e("s_endpgm")
    return name


def kr():
    global SV
    SV = [60, 61]
    name = "kr_reduce_kernel"
    kernel_begin(name)
    e("s_cmp_ge_u32 s2, 32")
    e("s_cbranch_scc1 KR_END")
    e("s_load_dwordx2 s[8:9], s[0:1], 72")
    e("v_lshrrev_b32 v4, 6, v0")
    e("s_nop 0")
    e("v_readfirstlane_b32 s24, v4")
    e("s_waitcnt lgkmcnt(0)")
    srd(20, 8, WS_END)
    stamp_init()
    stamp(1, 0)
    e("s_mul_i32 s25, s2, 1088")
    e(f"s_add_u32 s25, s25, 0x{WS_PART:x}")
    e("v_lshlrev_b32 v1, 2, v0")
    e("v_add_u32 v1, s25, v1")
    for rb in range(16):
        e(f"s_mov_b32 s26, {rb*32*1088}")
        e(f"buffer_load_dword v{16+rb}, v1, s[20:23], s26 offen")
    e("v_cmp_gt_u32 vcc, 16, v0")
    e("s_and_saveexec_b64 s[40:41], vcc")
    for rb in range(16):
        e(f"s_mov_b32 s26, {rb*32*1088}")
        e(f"buffer_load_dword v{32+rb}, v1, s[20:23], s26 offen offset:1024")
    e("s_mov_b64 exec, s[40:41]")
    e("s_waitcnt vmcnt(0)")
    for st in (1, 2, 4, 8):
        for i in range(0, 16, 2 * st):
            e(f"v_add_f32 v{16+i}, v{16+i}, v{16+i+st}")
    e("v_cvt_pk_bf16_f32 v16, v16, v16")
    e("v_and_b32 v2, 15, v0")
    e("v_lshrrev_b32 v3, 4, v0")
    e("v_lshlrev_b32 v2, 5, v2")
    e("v_bfe_u32 v4, v3, 2, 1")
    e("v_lshl_add_u32 v2, v4, 4, v2")
    e("v_and_b32 v4, 3, v3")
    e("v_lshl_add_u32 v2, v4, 1, v2")
    e("v_lshrrev_b32 v4, 3, v3")
    e("v_lshl_add_u32 v2, v4, 3, v2")
    e("s_lshl_b32 s26, s2, 10")
    e(f"s_add_u32 s26, s26, 0x{WS_KVZ:x}")
    e("v_add_u32 v2, s26, v2")
    e("buffer_store_short v16, v2, s[20:23], 0 offen")
    stamp(1, 1)
    e("v_cmp_gt_u32 vcc, 16, v0")
    e("s_and_saveexec_b64 s[40:41], vcc")
    e("s_cbranch_execz KR_END")
    for st in (1, 2, 4, 8):
        for i in range(0, 16, 2 * st):
            e(f"v_add_f32 v{32+i}, v{32+i}, v{32+i+st}")
    e("v_cvt_pk_bf16_f32 v32, v32, v32")
    e("v_bfe_u32 v4, v0, 2, 1")
    e("v_lshlrev_b32 v2, 4, v4")
    e("v_and_b32 v4, 3, v0")
    e("v_lshl_add_u32 v2, v4, 1, v2")
    e("v_lshrrev_b32 v4, 3, v0")
    e("v_lshl_add_u32 v2, v4, 3, v2")
    e("v_add_u32 v2, s26, v2")
    e(f"buffer_store_short v32, v2, s[20:23], 0 offen offset:{16*32}")
    e(f"buffer_store_short v32, v2, s[20:23], 0 offen offset:{20*32}")
    out.append("KR_END:")
    e("s_endpgm")
    return name


_lab = [0]


def pair_halves(ACC, T, XL):
    _lab[0] += 1
    L = _lab[0]
    e("s_barrier")
    e("s_lshl_b32 s28, s24, 11")
    e(f"s_add_u32 s28, s28, {XL}")
    e("v_lshlrev_b32 v14, 4, v1")
    e("v_add_u32 v14, s28, v14")
    e("s_xor_b32 s28, s28, 0x2000")
    e("v_lshlrev_b32 v15, 4, v1")
    e("v_add_u32 v15, s28, v15")
    e("s_cmp_eq_u32 s35, 0")
    e(f"s_cbranch_scc0 PH1_{L}")
    e(f"ds_write_b128 v14, v[{ACC+8}:{ACC+11}]")
    e(f"ds_write_b128 v14, v[{ACC+12}:{ACC+15}] offset:1024")
    for i in range(8):
        e(f"v_mov_b32 v{T+i}, v{ACC+i}")
    e(f"s_branch PH2_{L}")
    out.append(f"PH1_{L}:")
    e(f"ds_write_b128 v14, v[{ACC}:{ACC+3}]")
    e(f"ds_write_b128 v14, v[{ACC+4}:{ACC+7}] offset:1024")
    for i in range(8):
        e(f"v_mov_b32 v{T+i}, v{ACC+8+i}")
    out.append(f"PH2_{L}:")
    e("s_waitcnt lgkmcnt(0)")
    e("s_barrier")
    e(f"ds_read_b128 v[{ACC}:{ACC+3}], v15")
    e(f"ds_read_b128 v[{ACC+4}:{ACC+7}], v15 offset:1024")
    e("s_waitcnt lgkmcnt(0)")
    for i in range(8):
        e(f"v_add_f32 v{T+i}, v{T+i}, v{ACC+i}")


def k2():
    global SV
    SV = [174, 175]
    name = "k2_attnout_kernel"
    kernel_begin(name)
    cx = Ctx()
    e("s_cmp_ge_u32 s2, 256")
    e("s_cbranch_scc1 K2_END")
    e("s_load_dwordx2 s[4:5], s[0:1], 0")
    e("s_load_dwordx2 s[6:7], s[0:1], 16")
    e("s_load_dwordx2 s[8:9], s[0:1], 72")
    e("s_load_dwordx4 s[40:43], s[0:1], 32")
    e("s_load_dwordx2 s[10:11], s[0:1], 48")
    common_ids()
    wg_map()
    e("s_waitcnt lgkmcnt(0)")
    srd(12, 4, S * D * 2)
    srd(16, 6, D * D * 2)
    srd(20, 8, WS_END)
    srd(44, 40, D * F * 2)
    srd(48, 42, D * F * 2)
    srd(52, 10, D * F * 2)
    stamp_init()
    stamp(2, 0)
    A = 16
    DS = [80, 96, 112]
    ACC = 128
    XR = 144
    T = 152
    KV = 0
    BFB = 64
    e("v_lshrrev_b32 v10, 2, v1")
    e("s_lshl_b32 s28, s24, 6")
    e("v_add_u32 v10, s28, v10")
    e("v_lshlrev_b32 v10, 10, v10")
    e("v_and_b32 v11, 3, v1")
    e("v_lshl_add_u32 v10, v11, 4, v10")
    e("s_lshl_b32 s29, s26, 6")
    e("v_add_u32 v10, s29, v10")
    e("s_lshl_b32 s30, s24, 12")
    e("v_lshlrev_b32 v11, 5, v2")
    e("v_lshl_add_u32 v11, v3, 4, v11")
    e("s_lshl_b32 s28, s35, 10")
    e(f"s_add_u32 s28, s28, 0x{WS_KVZ:x}")
    e("v_add_u32 v11, s28, v11")
    e("s_lshl_b32 s27, s25, 2")
    e("s_add_u32 s27, s27, s34")
    e("s_lshl_b32 s28, s27, 15")
    e("v_lshlrev_b32 v8, 4, v1")
    e("v_add_u32 v8, s28, v8")
    e("s_lshl_b32 s28, s35, 10")
    e("v_add_u32 v9, s28, v8")
    for i in range(16):
        if i % 2 == 0 and i:
            e("v_add_u32 v11, 0x1000, v11")
            e("v_add_u32 v9, 0x1000, v9")
        cx.emit(("V", f"buffer_load_dwordx4 a[{KV+4*i}:{KV+4*i+3}], v11, s[20:23], 0 offen offset:{(i%2)*2048}", ("h", i)))
        cx.emit(("V", f"buffer_load_dwordx4 v[{A+4*i}:{A+4*i+3}], v9, s[20:23], 0 offen offset:{WS_PQ + (i%2)*2048}", ("h", i)))
        if i == 3:
            for ii in range(4):
                e(f"s_mov_b32 s31, {ii*16384}")
                e(f"s_add_u32 m0, s30, {ii*1024}")
                e("s_nop 0")
                cx.emit(("V", "buffer_load_dwordx4 v10, s[16:19], s31 offen lds", "B"))
    e("s_lshl_b32 s28, s27, 5")
    e("v_add_u32 v4, s28, v2")
    e("v_lshlrev_b32 v4, 10, v4")
    e("v_lshl_add_u32 v4, v3, 3, v4")
    e("s_lshl_b32 s29, s26, 6")
    e("s_lshl_b32 s28, s35, 5")
    e("s_add_u32 s29, s29, s28")
    e("v_add_u32 v4, s29, v4")
    for q in range(2):
        cx.emit(("V", f"buffer_load_dwordx2 v[{XR+2*q}:{XR+2*q+1}], v4, s[12:15], 0 offen offset:{16*q}", "X"))
    e("s_mul_i32 s28, s2, 5504")
    e("v_lshlrev_b32 v9, 4, v0")
    e("v_add_u32 v9, s28, v9")
    for i in range(3):
        cx.emit(("V", f"buffer_load_dwordx4 v[{162+4*i}:{165+4*i}], v9, s[{44+4*i}:{47+4*i}], 0 offen", "PF"))
    tr_parts()
    e("v_lshl_add_u32 v12, v3, 2, v5")
    e("v_lshlrev_b32 v12, 6, v12")
    e("v_lshl_add_u32 v12, v7, 5, v12")
    e("v_lshl_add_u32 v12, v6, 3, v12")
    e("s_lshl_b32 s28, s35, 10")
    e("v_add_u32 v12, s28, v12")

    def omfma(i):
        d = DS[i % 3]
        cx.vm.wait({("h", i)})
        e(f"v_mfma_f32_32x32x16_bf16 v[{d}:{d+15}], a[{KV+4*i}:{KV+4*i+3}], v[{A+4*i}:{A+4*i+3}], 0")

    def oproc(i):
        d = DS[i % 3]
        ops = [f"v_add_f32 v{T}, 0x358637bd, v{d+8}", f"v_rcp_f32 v{T}, v{T}", "s_nop 0"]
        for m in range(8):
            ops.append(f"v_mul_f32 v{d+m}, v{d+m}, v{T}")
        for m in range(4):
            ops.append(f"v_cvt_pk_bf16_f32 v{A+4*i+m}, v{d+2*m}, v{d+2*m+1}")
        return ops

    LA, NBUF = 2, 3

    def reads(i):
        b = BFB + 4 * (i % NBUF)
        return [("L", f"ds_read_b64_tr_b16 a[{b}:{b+1}], v12 offset:{i*2048}", ("b", i)),
                ("L", f"ds_read_b64_tr_b16 a[{b+2}:{b+3}], v12 offset:{i*2048+512}", ("b", i))]

    stamp(2, 1)
    omfma(0)
    omfma(1)
    cx.vm.wait({"B"})
    e("s_barrier")
    stamp(2, 2)
    for i in range(LA):
        cx.emits(reads(i))
    e("s_nop 7")
    e("s_nop 3")
    for op in oproc(0):
        e(op)
    for i in range(16):
        b = BFB + 4 * (i % NBUF)
        if i + 2 < 16:
            omfma(i + 2)
        if i + LA < 16:
            cx.emits(reads(i + LA))
        if i + 1 < 16:
            ops = oproc(i + 1)
            for op in ops[:8]:
                e(op)
        cx.lg.wait({("b", i)})
        cc = "0" if i == 0 else f"v[{ACC}:{ACC+15}]"
        e(f"v_mfma_f32_32x32x16_bf16 v[{ACC}:{ACC+15}], a[{b}:{b+3}], v[{A+4*i}:{A+4*i+3}], {cc}")
        if i + 1 < 16:
            for op in ops[8:]:
                e(op)
    e("s_nop 7")
    e("s_nop 7")
    stamp(2, 3)
    pair_halves(ACC, T, 0)
    cx.vm.wait({"X"})
    for i in range(4):
        x = XR + i
        e(f"v_lshlrev_b32 v{T+8}, 16, v{x}")
        e(f"v_and_b32 v{T+9}, 0xffff0000, v{x}")
        e(f"v_add_f32 v{T+8}, v{T+8}, v{T+2*i}")
        e(f"v_add_f32 v{T+9}, v{T+9}, v{T+2*i+1}")
        e(f"v_cvt_pk_bf16_f32 v{x}, v{T+8}, v{T+9}")
    e("s_lshl_b32 s29, s26, 11")
    e("s_lshl_b32 s28, s35, 10")
    e("s_add_u32 s29, s29, s28")
    e(f"s_add_u32 s29, s29, 0x{WS_H:x}")
    e("v_add_u32 v8, s29, v8")
    e(f"buffer_store_dwordx4 v[{XR}:{XR+3}], v8, s[20:23], 0 offen")
    stamp(2, 4)
    out.append("K2_END:")
    e("s_endpgm")
    return name


def k3():
    global SV
    SV = [206, 207]
    name = "k3_gateup_kernel"
    kernel_begin(name)
    cx = Ctx()
    e("s_cmp_ge_u32 s2, 240")
    e("s_cbranch_scc1 K3_END")
    e("s_load_dwordx2 s[4:5], s[0:1], 32")
    e("s_load_dwordx2 s[6:7], s[0:1], 40")
    e("s_load_dwordx2 s[8:9], s[0:1], 72")
    common_ids()
    wg_map()
    e("s_waitcnt lgkmcnt(0)")
    srd(12, 4, D * F * 2)
    srd(16, 6, D * F * 2)
    srd(20, 8, WS_END)
    stamp_init()
    stamp(3, 0)
    A = 16
    ACC = 80
    T = 176
    DV = 200
    R = 6
    SLOT = 24576
    XS = R * SLOT
    e("s_lshl_b32 s27, s25, 2")
    e("s_add_u32 s27, s27, s34")
    e("s_lshl_b32 s28, s27, 15")
    e("s_lshl_b32 s29, s35, 10")
    e("s_add_u32 s28, s28, s29")
    e(f"s_add_u32 s28, s28, 0x{WS_H:x}")
    e("v_lshlrev_b32 v9, 4, v1")
    e("v_add_u32 v9, s28, v9")
    for n in range(16):
        if n % 2 == 0 and n:
            e("v_add_u32 v9, 0x1000, v9")
        cx.emit(("V", f"buffer_load_dwordx4 v[{A+4*n}:{A+4*n+3}], v9, s[20:23], 0 offen offset:{(n%2)*2048}", "A"))
    e("s_movk_i32 s29, 2752")
    e("s_mov_b32 s28, 43691")
    e("s_mul_i32 s32, s26, 192")
    e("s_lshl_b32 s33, s34, 4")
    for i in range(3):
        d = DV + i
        e(f"v_add_u32 v14, {64*i}, v1")
        e("v_mul_lo_u32 v15, v14, s28")
        e("v_lshrrev_b32 v15, 19, v15")
        e("v_mul_u32_u24 v8, 12, v15")
        e("v_sub_u32 v14, v14, v8")
        e("v_add_u32 v15, s33, v15")
        e(f"v_mul_lo_u32 v{d}, v15, s29")
        e(f"v_lshl_add_u32 v{d}, v14, 4, v{d}")
        e(f"v_add_u32 v{d}, s32, v{d}")
    e("s_mul_i32 s30, s34, 3072")
    e("s_mul_i32 s28, s35, 12288")
    e("s_add_u32 s30, s30, s28")
    e("s_cmp_eq_u32 s35, 0")
    e("s_cselect_b32 s36, s12, s16")
    e("s_cselect_b32 s37, s13, s17")
    e("s_mov_b32 s38, s14")
    e("s_mov_b32 s39, 0x00020000")

    def dma_ops(st):
        ops = []
        for i in range(3):
            ops.append(f"s_mov_b32 s31, {st*64*2752}")
            ops.append(f"s_add_u32 m0, s30, {(st % R)*SLOT + i*1024}")
            ops.append("s_nop 0")
            ops.append(("V", f"buffer_load_dwordx4 v{DV+i}, s[36:39], s31 offen lds", ("B", st)))
        return ops

    tr_parts()
    e("v_lshl_add_u32 v12, v3, 2, v5")
    e("v_mul_u32_u24 v12, 192, v12")
    e("v_lshl_add_u32 v12, v7, 5, v12")
    e("v_lshl_add_u32 v12, v6, 3, v12")
    e("s_mul_i32 s28, s35, 3072")
    e("v_add_u32 v12, s28, v12")
    e("v_add_u32 v13, 0xc000, v12")
    e("v_add_u32 v11, 0x18000, v12")
    for st in range(2):
        cx.emits(dma_ops(st))
    stamp(3, 1)
    cx.vm.wait({"A"})
    stamp(3, 2)
    RS, NB = 14, 15
    s0, s1, q0, q1, ones = T, T + 1, T + 2, T + 3, T + 4
    e(f"v_mov_b32 v{ones}, 0x3f803f80")
    for r in (s0, s1, q0, q1):
        e(f"v_mov_b32 v{r}, 0")
    main = []
    for i in range(64):
        main.append(f"v_dot2c_f32_bf16 v{s0 if i % 2 == 0 else s1}, v{A+i}, v{ones}")
        main.append(f"v_dot2c_f32_bf16 v{q0 if i % 2 == 0 else q1}, v{A+i}, v{A+i}")
    cx.spread(main, [])
    e("s_nop 3")
    e(f"v_add_f32 v{s0}, v{s0}, v{s1}")
    e(f"v_add_f32 v{q0}, v{q0}, v{q1}")
    e(f"v_mov_b32 v{s1}, v{s0}")
    e(f"v_mov_b32 v{q1}, v{q0}")
    e("s_nop 1")
    e(f"v_permlane32_swap_b32 v{s0}, v{s1}")
    e(f"v_permlane32_swap_b32 v{q0}, v{q1}")
    e("s_nop 1")
    e(f"v_add_f32 v{s0}, v{s0}, v{s1}")
    e(f"v_add_f32 v{s1}, v{q0}, v{q1}")
    e("s_lshl_b32 s28, s24, 8")
    e(f"s_add_u32 s28, s28, {XS}")
    e("v_lshlrev_b32 v8, 3, v2")
    e("v_add_u32 v9, s28, v8")
    e("s_xor_b32 s28, s28, 0x400")
    e("v_add_u32 v8, s28, v8")
    e(f"ds_write_b64 v9, v[{s0}:{s1}]")
    e("s_waitcnt lgkmcnt(0)")
    e("s_barrier")
    e(f"ds_read_b64 v[{q0}:{q1}], v8")
    e("s_waitcnt lgkmcnt(0)")
    e(f"v_add_f32 v{s0}, v{s0}, v{q0}")
    e(f"v_add_f32 v{q0}, v{s1}, v{q1}")
    finish_stats(s0, q0, RS, NB, 1)
    for r in range(4):
        cx.emits(ln_apply_ops(A + r, RS, NB, T))

    def reads(n):
        st, t2 = n // 2, n % 2
        sl = st % R
        va = [12, 13, 11][sl // 2]
        base = (sl % 2) * SLOT + t2 * 32 * 192
        b = 24 * (n % 2)
        ops = []
        for p in range(2):
            for u in range(3):
                o = base + p * 12288 + u * 64
                k = (p * 3 + u) * 4
                ops.append(("L", f"ds_read_b64_tr_b16 a[{b+k}:{b+k+1}], v{va} offset:{o}", ("b", n)))
                ops.append(("L", f"ds_read_b64_tr_b16 a[{b+k+2}:{b+k+3}], v{va} offset:{o+8*192}", ("b", n)))
        return ops

    def pre(n):
        if n % 2 == 0:
            cx.vm.wait({("B", n // 2)})
            e("s_barrier")

    stamp(3, 3)
    pre(0)
    cx.emits(reads(0))
    for n in range(16):
        cx.lg.wait({("b", n)})
        fill = []
        if n + 1 < 16:
            pre(n + 1)
            fill += reads(n + 1)
        b = 24 * (n % 2)
        a = f"v[{A+4*n}:{A+4*n+3}]"
        main = []
        for x in range(6):
            cc = "0" if n == 0 else f"v[{ACC+16*x}:{ACC+16*x+15}]"
            main.append(f"v_mfma_f32_32x32x16_bf16 v[{ACC+16*x}:{ACC+16*x+15}], a[{b+4*x}:{b+4*x+3}], {a}, {cc}")
        f2 = []
        if n + 1 < 16:
            for r in range(4):
                f2 += ln_apply_ops(A + 4 * (n + 1) + r, RS, NB, T + 2 * (r & 1))
        st = n // 2
        if n == 0:
            f2 += dma_ops(2)
        if n % 2 == 1 and st + 3 < 8:
            f2 += dma_ops(st + 3)
        cx.spread(main, merge(fill, f2))
    e("s_nop 7")
    e("s_nop 7")
    stamp(3, 4)
    e("s_barrier")
    e("s_lshl_b32 s28, s24, 14")
    e("v_lshlrev_b32 v8, 4, v1")
    e("v_add_u32 v9, s28, v8")
    e("s_xor_b32 s28, s28, 0x10000")
    e("v_add_u32 v8, s28, v8")
    e("s_mul_i32 s28, s27, 88064")
    e("s_mul_i32 s29, s26, 6144")
    e("s_add_u32 s28, s28, s29")
    e(f"s_add_u32 s28, s28, 0x{WS_HH:x}")
    e("v_lshlrev_b32 v10, 4, v1")
    e("v_add_u32 v10, s28, v10")
    G = [ACC, ACC + 16, ACC + 32]
    U = [ACC + 48, ACC + 64, ACC + 80]

    def fin(u):
        for i in range(16):
            e(f"v_mul_f32 v{G[u]+i}, v{G[u]+i}, v{U[u]+i}")
        for q in range(8):
            e(f"v_cvt_pk_bf16_f32 v{U[u]+q}, v{G[u]+2*q}, v{G[u]+2*q+1}")
        e(f"s_movk_i32 s31, {2048*u}")
        for tt in range(2):
            e(f"buffer_store_dwordx4 v[{U[u]+4*tt}:{U[u]+4*tt+3}], v10, s[20:23], s31 offen offset:{1024*tt}")

    e("s_cmp_eq_u32 s35, 0")
    e("s_cbranch_scc0 K3_KP1")
    for i, base in enumerate((G[2], U[2])):
        for q in range(4):
            e(f"ds_write_b128 v9, v[{base+4*q}:{base+4*q+3}] offset:{(4*i+q)*1024}")
    e("s_waitcnt lgkmcnt(0)")
    e("s_barrier")
    for i in range(16):
        e(f"ds_read_b128 v[{A+4*i}:{A+4*i+3}], v8 offset:{i*1024}")
    for i, base in enumerate((G[0], U[0], G[1], U[1])):
        e(f"s_waitcnt lgkmcnt({12-4*i})")
        for q in range(16):
            e(f"v_add_f32 v{base+q}, v{base+q}, v{A+16*i+q}")
    fin(0)
    e("s_cmp_ge_u32 s26, 14")
    e("s_cbranch_scc1 K3_END")
    fin(1)
    stamp(3, 5)
    e("s_branch K3_END")
    out.append("K3_KP1:")
    for i, base in enumerate((G[0], U[0], G[1], U[1])):
        for q in range(4):
            e(f"ds_write_b128 v9, v[{base+4*q}:{base+4*q+3}] offset:{(4*i+q)*1024}")
    e("s_waitcnt lgkmcnt(0)")
    e("s_barrier")
    e("s_cmp_ge_u32 s26, 14")
    e("s_cbranch_scc1 K3_END")
    for i in range(8):
        e(f"ds_read_b128 v[{A+4*i}:{A+4*i+3}], v8 offset:{i*1024}")
    for i, base in enumerate((G[2], U[2])):
        e(f"s_waitcnt lgkmcnt({4-4*i})")
        for q in range(16):
            e(f"v_add_f32 v{base+q}, v{base+q}, v{A+16*i+q}")
    fin(2)
    stamp(3, 5)
    out.append("K3_END:")
    e("s_endpgm")
    return name


def k4():
    global SV
    SV = [62, 63]
    name = NAME + "_kernel"
    kernel_begin(name)
    cx = Ctx()
    e("s_cmp_ge_u32 s2, 256")
    e("s_cbranch_scc1 K4_END")
    e("s_load_dwordx2 s[4:5], s[0:1], 48")
    e("s_load_dwordx2 s[6:7], s[0:1], 56")
    e("s_load_dwordx2 s[8:9], s[0:1], 72")
    common_ids()
    e("s_and_b32 s25, s2, 7")
    e("s_lshl_b32 s25, s25, 2")
    e("s_bfe_u32 s26, s2, 0x20003")
    e("s_or_b32 s25, s25, s26")
    e("s_lshr_b32 s26, s2, 5")
    e("s_and_b32 s32, s24, 1")
    e("s_bfe_u32 s33, s24, 0x10001")
    e("s_waitcnt lgkmcnt(0)")
    srd(12, 4, F * D * 2)
    srd(16, 6, S * D * 2)
    srd(20, 8, WS_END)
    stamp_init()
    stamp(4, 0)
    NK = F // 16
    SL = 8
    NST = (NK + SL - 1) // SL
    R = 4
    SLOT = 32768
    ACC = 16
    XR = 32
    T = 40
    LA = 2
    NBUF = 3
    AFR = 0
    BFR = 4 * NBUF
    e("s_lshl_b32 s27, s25, 1")
    e("s_add_u32 s27, s27, s32")
    e("s_lshl_b32 s28, s27, 15")
    e("s_lshl_b32 s29, s26, 12")
    e("s_add_u32 s28, s28, s29")
    e("s_lshl_b32 s29, s33, 11")
    e("s_add_u32 s28, s28, s29")
    e("s_lshl_b32 s29, s35, 10")
    e("s_add_u32 s28, s28, s29")
    e(f"s_add_u32 s28, s28, 0x{WS_H:x}")
    e("v_lshlrev_b32 v14, 4, v1")
    e("v_add_u32 v14, s28, v14")
    cx.emit(("V", f"buffer_load_dwordx4 v[{XR}:{XR+3}], v14, s[20:23], 0 offen", "R"))
    e("s_mul_i32 s28, s27, 88064")
    e("s_lshr_b32 s29, s24, 1")
    e("s_lshl_b32 s29, s29, 11")
    e("s_add_u32 s28, s28, s29")
    e(f"s_add_u32 s28, s28, 0x{WS_HH:x}")
    e("v_lshlrev_b32 v15, 4, v1")
    e("v_add_u32 v15, s28, v15")
    e("s_lshl_b32 s36, s32, 13")
    e("s_add_u32 s36, s36, s29")
    e("v_lshrrev_b32 v10, 3, v1")
    e("v_and_b32 v11, 7, v1")
    e("v_bfe_u32 v8, v10, 1, 1")
    e("v_lshlrev_b32 v8, 2, v8")
    e("v_xor_b32 v11, v11, v8")
    e("s_lshl_b32 s28, s24, 4")
    e("v_add_u32 v10, s28, v10")
    e("v_lshlrev_b32 v10, 10, v10")
    e("v_lshl_add_u32 v10, v11, 4, v10")
    e("s_lshl_b32 s29, s26, 7")
    e("v_add_u32 v10, s29, v10")
    e("s_lshl_b32 s30, s24, 11")
    e("s_add_u32 s30, s30, 16384")

    def dma_ops(st):
        ops = []
        sl = (st % R) * SLOT
        for i in range(2):
            ops.append(f"s_mov_b32 s31, {st*SL*1024 + i*1024}")
            ops.append(f"s_add_u32 m0, s36, {sl + i*1024}")
            ops.append("s_nop 0")
            ops.append(("V", "buffer_load_dwordx4 v15, s[20:23], s31 offen lds", ("B", st)))
            ops.append(f"s_mov_b32 s31, {(st*128 + 8*i)*1024}")
            ops.append(f"s_add_u32 m0, s30, {sl + i*1024}")
            ops.append("s_nop 0")
            ops.append(("V", "buffer_load_dwordx4 v10, s[12:15], s31 offen lds", ("B", st)))
        return ops

    for st in range(3):
        cx.emits(dma_ops(st))
    tr_parts()
    e("v_lshl_add_u32 v12, v3, 2, v5")
    e("v_lshlrev_b32 v12, 7, v12")
    e("v_lshrrev_b32 v8, 1, v5")
    e("v_xor_b32 v8, s33, v8")
    e("v_lshl_add_u32 v12, v8, 6, v12")
    e("v_lshl_add_u32 v12, v7, 5, v12")
    e("v_lshl_add_u32 v12, v6, 3, v12")
    e("s_lshl_b32 s28, s35, 11")
    e("s_add_u32 s28, s28, 0x4000")
    e("v_add_u32 v12, s28, v12")
    e("v_add_u32 v13, 0x10000, v12")
    e("s_lshl_b32 s28, s32, 13")
    e("s_lshl_b32 s29, s35, 10")
    e("s_add_u32 s28, s28, s29")
    e("v_lshlrev_b32 v4, 4, v1")
    e("v_add_u32 v4, s28, v4")
    e("v_add_u32 v9, 0x10000, v4")
    stamp(4, 1)
    NL = NK // 2

    def reads(n):
        st, t2 = n // 4, n % 4
        sl = st % R
        hi = sl >= 2
        base = (sl % 2) * SLOT
        af = AFR + 4 * (n % NBUF)
        bf = BFR + 4 * (n % NBUF)
        return [("L", f"ds_read_b128 a[{af}:{af+3}], v{9 if hi else 4} offset:{base + t2*2048}", ("b", n)),
                ("L", f"ds_read_b64_tr_b16 a[{bf}:{bf+1}], v{13 if hi else 12} offset:{base + t2*4096}", ("b", n)),
                ("L", f"ds_read_b64_tr_b16 a[{bf+2}:{bf+3}], v{13 if hi else 12} offset:{base + t2*4096 + 1024}", ("b", n))]

    def pre(n):
        if n % 4 == 0:
            cx.vm.wait({("B", n // 4)})
            e("s_barrier")

    for n in range(LA):
        pre(n)
        cx.emits(reads(n))
    for n in range(NL):
        cx.lg.wait({("b", n)})
        af = AFR + 4 * (n % NBUF)
        bf = BFR + 4 * (n % NBUF)
        cc = "0" if n == 0 else f"v[{ACC}:{ACC+15}]"
        if n + LA < NL:
            pre(n + LA)
        e(f"v_mfma_f32_32x32x16_bf16 v[{ACC}:{ACC+15}], a[{bf}:{bf+3}], a[{af}:{af+3}], {cc}")
        if n + LA < NL:
            cx.emits(reads(n + LA))
        st, t2 = n // 4, n % 4
        if t2 >= 2 and st + 3 < NST:
            ops = dma_ops(st + 3)
            cx.emits(ops[(t2 - 2) * 8:(t2 - 2) * 8 + 8])
    e("s_nop 7")
    e("s_nop 7")
    stamp(4, 3)
    pair_halves(ACC, T, 0)
    cx.vm.wait({"R"})
    for i in range(4):
        x = XR + i
        e(f"v_lshlrev_b32 v{T+8}, 16, v{x}")
        e(f"v_and_b32 v{T+9}, 0xffff0000, v{x}")
        e(f"v_add_f32 v{T+8}, v{T+8}, v{T+2*i}")
        e(f"v_add_f32 v{T+9}, v{T+9}, v{T+2*i+1}")
        e(f"v_cvt_pk_bf16_f32 v{x}, v{T+8}, v{T+9}")
    e("s_lshl_b32 s28, s27, 5")
    e("v_add_u32 v8, s28, v2")
    e("v_lshlrev_b32 v9, 10, v8")
    e("v_lshl_add_u32 v9, v3, 3, v9")
    e("s_lshl_b32 s29, s26, 7")
    e("s_lshl_b32 s28, s33, 6")
    e("s_add_u32 s29, s29, s28")
    e("s_lshl_b32 s28, s35, 5")
    e("s_add_u32 s29, s29, s28")
    e("v_add_u32 v9, s29, v9")
    for q in range(2):
        e(f"buffer_store_dwordx2 v[{XR+2*q}:{XR+2*q+1}], v9, s[16:19], 0 offen offset:{16*q}")
    stamp(4, 4)
    out.append("K4_END:")
    e("s_endpgm")
    return name


def main():
    hdr = open("cdna_kernels/%s.s.ref" % NAME).read().splitlines()
    for l in hdr:
        if "@launch" in l and "grid=(4096" in l:
            break
        out.append(l.replace("@launch", "launch"))
    out.append("; @launch kernel=k1_qkv_kernel grid=(256,1,1) block=(512,1,1) lds=133120")
    out.append("; @launch kernel=kr_reduce_kernel grid=(32,1,1) block=(256,1,1) lds=0")
    out.append("; @launch kernel=k2_attnout_kernel grid=(256,1,1) block=(512,1,1) lds=32768")
    out.append("; @launch kernel=k3_gateup_kernel grid=(240,1,1) block=(512,1,1) lds=149504")
    out.append(f"; @launch kernel={NAME}_kernel grid=(256,1,1) block=(512,1,1) lds=131072")
    out.append('.amdgcn_target "amdgcn-amd-amdhsa--gfx950"')
    out.append(".text")
    n1 = k1()
    nr = kr()
    n2 = k2()
    n3 = k3()
    n4 = k4()
    out.append('.section .rodata,"a"')
    kdesc(n1, 216, 176)
    kdesc(nr, 64, 64)
    kdesc(n2, 256, 176)
    kdesc(n3, 256, 208)
    kdesc(n4, 96, 64)
    path = sys.argv[1] if len(sys.argv) > 1 else "cdna_kernels/%s.s" % NAME
    open(path, "w").write("\n".join(out) + "\n")


main()
```

```python
import sys, os

NAME = "sequential_preLN__linear_attn_block__glu_gated_bilinear__prompt"
S, D, F = 2048, 512, 1376
WS_PQ = 0x000000
WS_PART = 0x200000
WS_KVZ = 0x300000
WS_H = 0x400000
WS_HH = 0x600000
WS_END = 0x600000 + S * F * 2
STAMP = len(sys.argv) > 2 and sys.argv[2] == "stamp"
WS_STAMP = 0xF000000

out = []


def e(s=""):
    out.append("    " + s if s and not s.endswith(":") else s)


def srd(base, ptr, size):
    e(f"s_mov_b32 s{base}, s{ptr}")
    e(f"s_mov_b32 s{base+1}, s{ptr+1}")
    e(f"s_mov_b32 s{base+2}, 0x{size:x}")
    e(f"s_mov_b32 s{base+3}, 0x00020000")


def kernel_begin(name):
    out.append(".p2align 8")
    out.append(f".globl {name}")
    out.append(f".type {name},@function")
    out.append(f"{name}:")


def kdesc(name, vgpr, accum, sgpr=96):
    out.append(".p2align 6")
    out.append(f".amdhsa_kernel {name}")
    out.append(f"  .amdhsa_next_free_vgpr {vgpr}")
    out.append(f"  .amdhsa_next_free_sgpr {sgpr}")
    out.append(f"  .amdhsa_accum_offset {accum}")
    out.append("  .amdhsa_group_segment_fixed_size 0")
    out.append("  .amdhsa_kernarg_size 80")
    out.append("  .amdhsa_user_sgpr_count 2")
    out.append("  .amdhsa_user_sgpr_kernarg_segment_ptr 1")
    out.append("  .amdhsa_system_sgpr_workgroup_id_x 1")
    out.append(".end_amdhsa_kernel")


SV = [14, 15]


def stamp(kidx, n):
    if not STAMP:
        return
    a, b = SV
    e("s_memtime s[60:61]")
    e("s_memrealtime s[68:69]")
    e("s_waitcnt lgkmcnt(0)")
    e(f"v_mov_b32 v{a}, s60")
    e("s_lshl_b32 s62, s2, 3")
    e("s_add_u32 s62, s62, s24")
    e("s_lshl_b32 s62, s62, 5")
    e(f"s_add_u32 s62, s62, {WS_STAMP + kidx*0x10000}")
    e(f"v_mov_b32 v{b}, s62")
    e(f"buffer_store_dword v{a}, v{b}, s[64:67], 0 offen offset:{n*4}")
    e(f"v_mov_b32 v{a}, s68")
    e(f"buffer_store_dword v{a}, v{b}, s[64:67], 0 offen offset:{24 if n == 0 else 28}")


def stamp_init():
    if STAMP:
        srd(64, 8, 0x10000000)


def common_ids():
    e("v_and_b32 v1, 63, v0")
    e("v_lshrrev_b32 v4, 6, v0")
    e("s_nop 0")
    e("v_readfirstlane_b32 s24, v4")
    e("v_and_b32 v2, 31, v1")
    e("v_lshrrev_b32 v3, 5, v1")
    e("s_and_b32 s34, s24, 3")
    e("s_lshr_b32 s35, s24, 2")


def wg_map():
    e("s_and_b32 s25, s2, 7")
    e("s_lshl_b32 s25, s25, 1")
    e("s_bfe_u32 s26, s2, 0x10003")
    e("s_or_b32 s25, s25, s26")
    e("s_lshr_b32 s26, s2, 4")


def tr_parts():
    e("v_bfe_u32 v5, v1, 2, 2")
    e("v_and_b32 v6, 3, v1")
    e("v_bfe_u32 v7, v1, 4, 1")


def ln_apply_ops(reg, rs, nb, t0):
    lo, hi = t0, t0 + 1
    return [
        f"v_lshlrev_b32 v{lo}, 16, v{reg}",
        f"v_and_b32 v{hi}, 0xffff0000, v{reg}",
        f"v_fma_f32 v{lo}, v{lo}, v{rs}, v{nb}",
        f"v_fma_f32 v{hi}, v{hi}, v{rs}, v{nb}",
        f"v_cvt_pk_bf16_f32 v{reg}, v{lo}, v{hi}",
    ]


def phi_ops(regs, tmp):
    for i, r in enumerate(regs):
        e(f"v_mul_f32 v{tmp+i}, 0x3fb8aa3b, v{r}")
    for i, r in enumerate(regs):
        e(f"v_min_f32 v{tmp+i}, 0, v{tmp+i}")
    for i, r in enumerate(regs):
        e(f"v_exp_f32 v{tmp+i}, v{tmp+i}")
    for i, r in enumerate(regs):
        e(f"v_max_f32 v{r}, 0, v{r}")
    for i, r in enumerate(regs):
        e(f"v_add_f32 v{tmp+i}, 0x358637bd, v{tmp+i}")
    for i, r in enumerate(regs):
        e(f"v_add_f32 v{r}, v{r}, v{tmp+i}")


class Cnt:
    def __init__(self, name, cap):
        self.q, self.name, self.cap = [], name, cap

    def issue(self, tag):
        self.q.append(tag)

    def wait(self, tags):
        idx = -1
        for i, t in enumerate(self.q):
            if t in tags:
                idx = i
        if idx < 0:
            return
        n = min(len(self.q) - 1 - idx, self.cap)
        e(f"s_waitcnt {self.name}({n})")
        self.q = self.q[len(self.q) - n:] if n else []


class Ctx:
    def __init__(self):
        self.vm = Cnt("vmcnt", 63)
        self.lg = Cnt("lgkmcnt", 15)

    def emit(self, op):
        if isinstance(op, tuple):
            e(op[1])
            (self.vm if op[0] == "V" else self.lg).issue(op[2])
        else:
            e(op)

    def emits(self, ops):
        for op in ops:
            self.emit(op)

    def spread(self, main, fill):
        n = len(main)
        k = 0
        for i, mm in enumerate(main):
            e(mm)
            tgt = (len(fill) * (i + 1)) // n
            while k < tgt:
                self.emit(fill[k])
                k += 1


def merge(a, b):
    o = []
    i = j = 0
    while i < len(a) or j < len(b):
        if j >= len(b) or (i < len(a) and i * len(b) <= j * len(a)):
            o.append(a[i]); i += 1
        else:
            o.append(b[j]); j += 1
    return o


def finish_stats(sm, qm, rs, nb, n):
    for m in range(n):
        e(f"v_mul_f32 v{sm+m}, 0x3b000000, v{sm+m}")
        e(f"v_mul_f32 v{qm+m}, 0x3b000000, v{qm+m}")
    for m in range(n):
        e(f"v_fma_f32 v{qm+m}, -v{sm+m}, v{sm+m}, v{qm+m}")
    for m in range(n):
        e(f"v_max_f32 v{qm+m}, 0, v{qm+m}")
    for m in range(n):
        e(f"v_add_f32 v{qm+m}, 0x3727c5ac, v{qm+m}")
    for m in range(n):
        e(f"v_rsq_f32 v{rs+m}, v{qm+m}")
    e("s_nop 0")
    for m in range(n):
        e(f"v_mul_f32 v{nb+m}, v{sm+m}, v{rs+m}")
    for m in range(n):
        e(f"v_sub_f32 v{nb+m}, 0, v{nb+m}")


def k1():
    global SV
    name = "k1_qkv_kernel"
    kernel_begin(name)
    cx = Ctx()
    SV = [174, 175]
    e("s_cmp_ge_u32 s2, 256")
    e("s_cbranch_scc1 K1_END")
    e("s_load_dwordx2 s[4:5], s[0:1], 0")
    e("s_load_dwordx2 s[6:7], s[0:1], 8")
    e("s_load_dwordx2 s[8:9], s[0:1], 72")
    e("s_load_dwordx2 s[10:11], s[0:1], 16")
    common_ids()
    wg_map()
    e("s_waitcnt lgkmcnt(0)")
    srd(12, 4, S * D * 2)
    srd(16, 6, D * 3 * D * 2)
    srd(20, 8, WS_END)
    srd(44, 10, D * D * 2)
    stamp_init()
    stamp(0, 0)
    A = 16
    ACQ, ACK, ACV = 80, 96, 112
    WA, RA, RSN = 128, 132, 136
    T = 144
    AF = 0
    BFB = 16
    XS = 131072
    e("s_lshl_b32 s27, s25, 7")
    e("s_lshl_b32 s28, s34, 5")
    e("s_add_u32 s27, s27, s28")
    e("v_lshrrev_b32 v8, 3, v1")
    e("v_and_b32 v11, 7, v1")
    e("v_add_u32 v9, s27, v8")
    e("v_lshlrev_b32 v9, 10, v9")
    e("v_lshl_add_u32 v9, v11, 4, v9")
    e("s_lshl_b32 s28, s35, 7")
    e("v_add_u32 v9, s28, v9")
    for cc in range(4):
        for m in range(4):
            e(f"s_mov_b32 s31, {m*8192}")
            r = A + (m * 4 + cc) * 4
            cx.emit(("V", f"buffer_load_dwordx4 v[{r}:{r+3}], v9, s[12:15], s31 offen offset:{256*cc}", "A"))
    e("v_lshrrev_b32 v10, 2, v1")
    e("s_lshl_b32 s28, s24, 4")
    e("v_add_u32 v10, s28, v10")
    e("s_movk_i32 s29, 3072")
    e("v_mul_lo_u32 v10, v10, s29")
    e("v_and_b32 v14, 3, v1")
    e("v_lshl_add_u32 v10, v14, 4, v10")
    e("s_lshl_b32 s29, s26, 6")
    e("v_add_u32 v10, s29, v10")
    e("s_lshl_b32 s30, s24, 10")

    def dma(qq):
        ops = []
        for p in range(3):
            ops.append(f"s_mov_b32 s31, {p*1024 + 128*qq*3072}")
            ops.append(f"s_add_u32 m0, s30, {p*32768 + 128*qq*64}")
            ops.append("s_nop 0")
            ops.append(("V", "buffer_load_dwordx4 v10, s[16:19], s31 offen lds", ("B", qq)))
        return ops
    for qq in range(2):
        cx.emits(dma(qq))
    tr_parts()
    e("v_lshl_add_u32 v12, v3, 3, v5")
    e("v_lshlrev_b32 v12, 6, v12")
    e("v_lshl_add_u32 v12, v7, 5, v12")
    e("v_lshl_add_u32 v12, v6, 3, v12")
    e("v_add_u32 v13, 0x10000, v12")
    e("s_lshl_b32 s28, s24, 12")
    e("s_add_u32 s28, s28, 98304")
    for m in range(4):
        e(f"v_add_u32 v14, {8*m}, v8")
        e("v_bfe_u32 v15, v14, 1, 3")
        e("v_xor_b32 v15, v15, v11")
        e("v_lshlrev_b32 v15, 4, v15")
        e(f"v_lshl_add_u32 v{WA+m}, v14, 7, v15")
        e(f"v_add_u32 v{WA+m}, s28, v{WA+m}")
    for t in range(4):
        e(f"v_add_u32 v14, {2*t}, v3")
        e("v_bfe_u32 v15, v2, 1, 3")
        e("v_xor_b32 v15, v15, v14")
        e("v_lshlrev_b32 v15, 4, v15")
        e(f"v_lshl_add_u32 v{RA+t}, v2, 7, v15")
        e(f"v_add_u32 v{RA+t}, s28, v{RA+t}")
    stamp(0, 1)
    cx.vm.wait({"A"})
    stamp(0, 2)
    SM, QM, ONE = T, T + 4, T + 8
    e(f"v_mov_b32 v{ONE}, 0x3f803f80")
    for m in range(4):
        e(f"v_mov_b32 v{SM+m}, 0")
        e(f"v_mov_b32 v{QM+m}, 0")
    for cc in range(4):
        for r in range(4):
            for m in range(4):
                reg = A + (m * 4 + cc) * 4 + r
                e(f"v_dot2c_f32_bf16 v{SM+m}, v{reg}, v{ONE}")
                e(f"v_dot2c_f32_bf16 v{QM+m}, v{reg}, v{reg}")
    e("s_nop 3")
    for dpp in ("quad_perm:[1,0,3,2]", "quad_perm:[2,3,0,1]", "row_half_mirror"):
        for i in range(8):
            e(f"v_add_f32_dpp v{T+i}, v{T+i}, v{T+i} {dpp} row_mask:0xf bank_mask:0xf")
        e("s_nop 1")
    e("s_lshl_b32 s28, s24, 8")
    e(f"s_add_u32 s28, s28, {XS}")
    e("v_lshlrev_b32 v14, 3, v8")
    e("v_add_u32 v14, s28, v14")
    e("s_xor_b32 s28, s28, 0x400")
    e("v_lshlrev_b32 v15, 3, v8")
    e("v_add_u32 v15, s28, v15")
    for m in range(4):
        e(f"v_mov_b32 v{T+10+2*m}, v{SM+m}")
        e(f"v_mov_b32 v{T+11+2*m}, v{QM+m}")
    for m in range(4):
        e(f"ds_write_b64 v14, v[{T+10+2*m}:{T+11+2*m}] offset:{64*m}")
    e("s_waitcnt lgkmcnt(0)")
    e("s_barrier")
    for m in range(4):
        e(f"ds_read_b64 v[{T+10+2*m}:{T+11+2*m}], v15 offset:{64*m}")
    e("s_waitcnt lgkmcnt(0)")
    for m in range(4):
        e(f"v_add_f32 v{SM+m}, v{SM+m}, v{T+10+2*m}")
        e(f"v_add_f32 v{QM+m}, v{QM+m}, v{T+11+2*m}")
    finish_stats(SM, QM, RSN, RSN + 4, 4)

    def nw_ops(cc, m):
        ops = []
        base = A + (m * 4 + cc) * 4
        for r in range(4):
            ops += ln_apply_ops(base + r, RSN + m, RSN + 4 + m, T + 20 + 2 * (r & 1))
        ops.append(("L", f"ds_write_b128 v{WA+m}, v[{base}:{base+3}]", ("w", cc)))
        return ops

    def rd_ops(cc):
        return [("L", f"ds_read_b128 a[{AF+4*t}:{AF+4*t+3}], v{RA+t}", ("a", cc)) for t in range(4)]

    e("s_lshl_b32 s28, s35, 12")
    e("v_add_u32 v12, s28, v12")
    e("v_add_u32 v13, s28, v13")

    def reads(n):
        cc, t = n // 4, n % 4
        j0 = 8 * cc + t
        b = BFB + 12 * (n % 2)
        ops = []
        for (va, off, k) in ((12, j0*1024, 0), (12, j0*1024+256, 2), (12, 32768+j0*1024, 4),
                             (12, 32768+j0*1024+256, 6), (13, j0*1024, 8), (13, j0*1024+256, 10)):
            ops.append(("L", f"ds_read_b64_tr_b16 a[{b+k}:{b+k+1}], v{va} offset:{off}", ("b", n)))
        return ops

    def pre(n):
        if n % 4 == 0:
            cx.vm.wait({("B", n // 4)})
            e("s_barrier")

    for m in range(4):
        cx.emits(nw_ops(0, m))
    cx.emits(rd_ops(0))
    stamp(0, 3)
    pre(0)
    cx.emits(reads(0))
    for n in range(16):
        cc, t = n // 4, n % 4
        b = BFB + 12 * (n % 2)
        cx.lg.wait({("b", n), ("a", cc)})
        fill = []
        if n + 1 < 16:
            pre(n + 1)
            fill += reads(n + 1)
        a = f"a[{AF+4*t}:{AF+4*t+3}]"
        cq = "0" if n == 0 else f"v[{ACQ}:{ACQ+15}]"
        ck = "0" if n == 0 else f"v[{ACK}:{ACK+15}]"
        cv = "0" if n == 0 else f"v[{ACV}:{ACV+15}]"
        main = [
            f"v_mfma_f32_32x32x16_bf16 v[{ACQ}:{ACQ+15}], a[{b}:{b+3}], {a}, {cq}",
            f"v_mfma_f32_32x32x16_bf16 v[{ACK}:{ACK+15}], {a}, a[{b+4}:{b+7}], {ck}",
            f"v_mfma_f32_32x32x16_bf16 v[{ACV}:{ACV+15}], {a}, a[{b+8}:{b+11}], {cv}",
        ]
        f2 = []
        if cc + 1 < 4:
            f2 += nw_ops(cc + 1, t)
        if n in (0, 4):
            f2 += dma(2 + n // 4)
        cx.spread(main, merge(fill, f2))
        if t == 3 and cc + 1 < 4:
            cx.emits(rd_ops(cc + 1))
    e("s_lshl_b32 s28, s2, 11")
    e("v_lshlrev_b32 v14, 2, v0")
    e("v_add_u32 v14, s28, v14")
    e("buffer_load_dword v13, v14, s[44:47], 0 offen")
    e("s_nop 7")
    e("s_nop 7")
    stamp(0, 4)
    e("s_barrier")
    e("s_lshl_b32 s28, s24, 13")
    e("v_lshlrev_b32 v14, 4, v1")
    e("v_add_u32 v14, s28, v14")
    e("s_xor_b32 s28, s28, 0x8000")
    e("v_lshlrev_b32 v15, 4, v1")
    e("v_add_u32 v15, s28, v15")
    e("s_cmp_eq_u32 s35, 0")
    e("s_cbranch_scc0 K1_KP1")
    for i in range(4):
        e(f"ds_write_b128 v14, v[{ACQ+4*i}:{ACQ+4*i+3}] offset:{1024*i}")
    e("s_waitcnt lgkmcnt(0)")
    e("s_barrier")
    for i in range(8):
        e(f"ds_read_b128 v[{A+4*i}:{A+4*i+3}], v15 offset:{1024*i}")
    e("s_waitcnt lgkmcnt(0)")
    for i in range(32):
        e(f"v_add_f32 v{ACK+i}, v{ACK+i}, v{A+i}")
    phi_ops([ACK + i for i in range(16)], T)
    PK, VV, ON = A, A + 8, A + 16
    for m in range(8):
        e(f"v_cvt_pk_bf16_f32 v{PK+m}, v{ACK+2*m}, v{ACK+2*m+1}")
        e(f"v_cvt_pk_bf16_f32 v{VV+m}, v{ACV+2*m}, v{ACV+2*m+1}")
    for m in range(4):
        e(f"v_mov_b32 v{ON+m}, 0x3f803f80")
    e("s_nop 1")
    DKV, DZ = ACQ, ACK
    e(f"v_mfma_f32_32x32x16_bf16 v[{DKV}:{DKV+15}], v[{PK}:{PK+3}], v[{VV}:{VV+3}], 0")
    e(f"v_mfma_f32_32x32x16_bf16 v[{DZ}:{DZ+15}], v[{PK}:{PK+3}], v[{ON}:{ON+3}], 0")
    e(f"v_mfma_f32_32x32x16_bf16 v[{DKV}:{DKV+15}], v[{PK+4}:{PK+7}], v[{VV+4}:{VV+7}], v[{DKV}:{DKV+15}]")
    e(f"v_mfma_f32_32x32x16_bf16 v[{DZ}:{DZ+15}], v[{PK+4}:{PK+7}], v[{ON}:{ON+3}], v[{DZ}:{DZ+15}]")
    e("s_mul_i32 s29, s34, 2304")
    e("s_add_u32 s29, s29, 98304")
    e("v_and_b32 v5, 15, v1")
    e("v_lshlrev_b32 v5, 2, v5")
    e("v_lshl_add_u32 v5, v7, 10, v5")
    e("v_lshl_add_u32 v5, v3, 8, v5")
    e("v_add_u32 v5, s29, v5")
    e("v_cmp_ne_u32 vcc, 0, v7")
    e("s_nop 7")
    e("s_nop 7")
    for m in range(8):
        e(f"v_cndmask_b32 v{T+m}, v{DKV+m}, v{DKV+8+m}, vcc")
    for m in range(8):
        e(f"ds_write_b32 v5, v{T+m} offset:{(m&3)*64 + (m>>2)*512}")
    e("v_lshlrev_b32 v6, 4, v3")
    e("v_add_u32 v6, s29, v6")
    e("v_add_u32 v6, 2048, v6")
    e("s_mov_b32 s40, 1")
    e("s_mov_b32 s41, 1")
    e("s_mov_b64 exec, s[40:41]")
    for r in range(16):
        e(f"ds_write_b32 v6, v{DZ+r} offset:{(r&3)*4 + (r>>2)*32}")
    e("s_mov_b64 exec, -1")
    e("s_waitcnt lgkmcnt(0)")
    e("s_barrier")
    e("s_branch K1_SUM")
    out.append("K1_KP1:")
    for i in range(8):
        e(f"ds_write_b128 v14, v[{ACK+4*i}:{ACK+4*i+3}] offset:{1024*i}")
    e("s_waitcnt lgkmcnt(0)")
    e("s_barrier")
    for i in range(4):
        e(f"ds_read_b128 v[{A+4*i}:{A+4*i+3}], v15 offset:{1024*i}")
    e("s_waitcnt lgkmcnt(0)")
    for i in range(16):
        e(f"v_add_f32 v{ACQ+i}, v{ACQ+i}, v{A+i}")
    phi_ops([ACQ + i for i in range(16)], T)
    e("s_lshl_b32 s27, s25, 2")
    e("s_add_u32 s27, s27, s34")
    e("s_lshl_b32 s27, s27, 15")
    e("s_lshl_b32 s29, s26, 11")
    e("s_add_u32 s27, s27, s29")
    e("v_lshlrev_b32 v9, 4, v1")
    e("v_add_u32 v9, s27, v9")
    for q in range(8):
        e(f"v_cvt_pk_bf16_f32 v{T+q}, v{ACQ+2*q}, v{ACQ+2*q+1}")
    for t in range(2):
        e(f"buffer_store_dwordx4 v[{T+4*t}:{T+4*t+3}], v9, s[20:23], 0 offen offset:{WS_PQ + 1024*t}")
    e("s_barrier")
    out.append("K1_SUM:")
    e("v_lshlrev_b32 v5, 2, v0")
    e("v_add_u32 v5, 98304, v5")
    for w in range(4):
        e(f"ds_read_b32 v{T+16+w}, v5 offset:{w*2304}")
    e("v_cmp_gt_u32 vcc, 32, v0")
    e("s_and_saveexec_b64 s[40:41], vcc")
    for w in range(4):
        e(f"ds_read_b32 v{T+20+w}, v5 offset:{w*2304+2048}")
    e("s_mov_b64 exec, s[40:41]")
    e("s_lshl_b32 s29, s25, 5")
    e("s_lshl_b32 s30, s26, 1")
    e("s_add_u32 s29, s29, s30")
    e("s_mul_i32 s29, s29, 1088")
    e(f"s_add_u32 s29, s29, 0x{WS_PART:x}")
    e("v_lshrrev_b32 v6, 8, v0")
    e("v_lshlrev_b32 v6, 6, v6")
    e("v_lshl_add_u32 v6, v0, 2, v6")
    e("v_add_u32 v6, s29, v6")
    e("s_waitcnt lgkmcnt(0)")
    e(f"v_add_f32 v{T+16}, v{T+16}, v{T+17}")
    e(f"v_add_f32 v{T+18}, v{T+18}, v{T+19}")
    e(f"v_add_f32 v{T+16}, v{T+16}, v{T+18}")
    e(f"buffer_store_dword v{T+16}, v6, s[20:23], 0 offen")
    stamp(0, 5)
    e("v_cmp_gt_u32 vcc, 32, v0")
    e("s_and_saveexec_b64 s[40:41], vcc")
    e("s_cbranch_execz K1_END")
    e(f"v_add_f32 v{T+20}, v{T+20}, v{T+21}")
    e(f"v_add_f32 v{T+22}, v{T+22}, v{T+23}")
    e(f"v_add_f32 v{T+20}, v{T+20}, v{T+22}")
    e("v_lshrrev_b32 v6, 4, v0")
    e("v_mul_u32_u24 v6, 1088, v6")
    e("v_and_b32 v7, 15, v0")
    e("v_lshl_add_u32 v6, v7, 2, v6")
    e("v_add_u32 v6, s29, v6")
    e(f"buffer_store_dword v{T+20}, v6, s[20:23], 0 offen offset:1024")
    out.append("K1_END:")
    e("s_endpgm")
    return name


def kr():
    global SV
    SV = [60, 61]
    name = "kr_reduce_kernel"
    kernel_begin(name)
    e("s_cmp_ge_u32 s2, 32")
    e("s_cbranch_scc1 KR_END")
    e("s_load_dwordx2 s[8:9], s[0:1], 72")
    e("v_lshrrev_b32 v4, 6, v0")
    e("s_nop 0")
    e("v_readfirstlane_b32 s24, v4")
    e("s_waitcnt lgkmcnt(0)")
    srd(20, 8, WS_END)
    stamp_init()
    stamp(1, 0)
    e("s_mul_i32 s25, s2, 1088")
    e(f"s_add_u32 s25, s25, 0x{WS_PART:x}")
    e("v_lshlrev_b32 v1, 2, v0")
    e("v_add_u32 v1, s25, v1")
    for rb in range(16):
        e(f"s_mov_b32 s26, {rb*32*1088}")
        e(f"buffer_load_dword v{16+rb}, v1, s[20:23], s26 offen")
    e("v_cmp_gt_u32 vcc, 16, v0")
    e("s_and_saveexec_b64 s[40:41], vcc")
    for rb in range(16):
        e(f"s_mov_b32 s26, {rb*32*1088}")
        e(f"buffer_load_dword v{32+rb}, v1, s[20:23], s26 offen offset:1024")
    e("s_mov_b64 exec, s[40:41]")
    e("s_waitcnt vmcnt(0)")
    for st in (1, 2, 4, 8):
        for i in range(0, 16, 2 * st):
            e(f"v_add_f32 v{16+i}, v{16+i}, v{16+i+st}")
    e("v_cvt_pk_bf16_f32 v16, v16, v16")
    e("v_and_b32 v2, 15, v0")
    e("v_lshrrev_b32 v3, 4, v0")
    e("v_lshlrev_b32 v2, 4, v2")
    e("v_bfe_u32 v4, v3, 2, 1")
    e("v_lshl_add_u32 v2, v4, 9, v2")
    e("v_and_b32 v4, 3, v3")
    e("v_lshl_add_u32 v2, v4, 1, v2")
    e("v_lshrrev_b32 v4, 3, v3")
    e("v_lshl_add_u32 v2, v4, 3, v2")
    e("s_lshl_b32 s26, s2, 10")
    e(f"s_add_u32 s26, s26, 0x{WS_KVZ:x}")
    e("v_add_u32 v2, s26, v2")
    e("buffer_store_short v16, v2, s[20:23], 0 offen")
    stamp(1, 1)
    e("v_cmp_gt_u32 vcc, 16, v0")
    e("s_and_saveexec_b64 s[40:41], vcc")
    e("s_cbranch_execz KR_END")
    for st in (1, 2, 4, 8):
        for i in range(0, 16, 2 * st):
            e(f"v_add_f32 v{32+i}, v{32+i}, v{32+i+st}")
    e("v_cvt_pk_bf16_f32 v32, v32, v32")
    e("v_bfe_u32 v4, v0, 2, 1")
    e("v_lshlrev_b32 v2, 9, v4")
    e("v_and_b32 v4, 3, v0")
    e("v_lshl_add_u32 v2, v4, 1, v2")
    e("v_lshrrev_b32 v4, 3, v0")
    e("v_lshl_add_u32 v2, v4, 3, v2")
    e("v_add_u32 v2, s26, v2")
    e(f"buffer_store_short v32, v2, s[20:23], 0 offen offset:{16*16}")
    e(f"buffer_store_short v32, v2, s[20:23], 0 offen offset:{20*16}")
    out.append("KR_END:")
    e("s_endpgm")
    return name


_lab = [0]


def pair_halves(ACC, T, XL):
    _lab[0] += 1
    L = _lab[0]
    e("s_barrier")
    e("s_lshl_b32 s28, s24, 11")
    e(f"s_add_u32 s28, s28, {XL}")
    e("v_lshlrev_b32 v14, 4, v1")
    e("v_add_u32 v14, s28, v14")
    e("s_xor_b32 s28, s28, 0x2000")
    e("v_lshlrev_b32 v15, 4, v1")
    e("v_add_u32 v15, s28, v15")
    e("s_cmp_eq_u32 s35, 0")
    e(f"s_cbranch_scc0 PH1_{L}")
    e(f"ds_write_b128 v14, v[{ACC+8}:{ACC+11}]")
    e(f"ds_write_b128 v14, v[{ACC+12}:{ACC+15}] offset:1024")
    for i in range(8):
        e(f"v_mov_b32 v{T+i}, v{ACC+i}")
    e(f"s_branch PH2_{L}")
    out.append(f"PH1_{L}:")
    e(f"ds_write_b128 v14, v[{ACC}:{ACC+3}]")
    e(f"ds_write_b128 v14, v[{ACC+4}:{ACC+7}] offset:1024")
    for i in range(8):
        e(f"v_mov_b32 v{T+i}, v{ACC+8+i}")
    out.append(f"PH2_{L}:")
    e("s_waitcnt lgkmcnt(0)")
    e("s_barrier")
    e(f"ds_read_b128 v[{ACC}:{ACC+3}], v15")
    e(f"ds_read_b128 v[{ACC+4}:{ACC+7}], v15 offset:1024")
    e("s_waitcnt lgkmcnt(0)")
    for i in range(8):
        e(f"v_add_f32 v{T+i}, v{T+i}, v{ACC+i}")


def k2():
    global SV
    SV = [174, 175]
    name = "k2_attnout_kernel"
    kernel_begin(name)
    cx = Ctx()
    e("s_cmp_ge_u32 s2, 256")
    e("s_cbranch_scc1 K2_END")
    e("s_load_dwordx2 s[4:5], s[0:1], 0")
    e("s_load_dwordx2 s[6:7], s[0:1], 16")
    e("s_load_dwordx2 s[8:9], s[0:1], 72")
    e("s_load_dwordx4 s[40:43], s[0:1], 32")
    e("s_load_dwordx2 s[10:11], s[0:1], 48")
    common_ids()
    wg_map()
    e("s_waitcnt lgkmcnt(0)")
    srd(12, 4, S * D * 2)
    srd(16, 6, D * D * 2)
    srd(20, 8, WS_END)
    srd(44, 40, D * F * 2)
    srd(48, 42, D * F * 2)
    srd(52, 10, D * F * 2)
    stamp_init()
    stamp(2, 0)
    A = 16
    DS = [80, 96, 112]
    ACC = 128
    XR = 144
    T = 152
    KV = 0
    BFB = 16
    e("v_lshrrev_b32 v10, 2, v1")
    e("s_lshl_b32 s28, s24, 6")
    e("v_add_u32 v10, s28, v10")
    e("v_lshlrev_b32 v10, 10, v10")
    e("v_and_b32 v11, 3, v1")
    e("v_lshl_add_u32 v10, v11, 4, v10")
    e("s_lshl_b32 s29, s26, 6")
    e("v_add_u32 v10, s29, v10")
    e("s_lshl_b32 s30, s24, 12")
    e("s_lshl_b32 s27, s25, 2")
    e("s_add_u32 s27, s27, s34")
    e("s_lshl_b32 s28, s27, 15")
    e("v_lshlrev_b32 v8, 4, v1")
    e("v_add_u32 v8, s28, v8")
    e("s_lshl_b32 s28, s35, 10")
    e("v_add_u32 v9, s28, v8")
    e("v_lshlrev_b32 v11, 4, v1")
    e("s_lshl_b32 s28, s24, 12")
    e(f"s_add_u32 s28, s28, 0x{WS_KVZ:x}")
    e("v_add_u32 v11, s28, v11")
    for ii in range(4):
        e(f"s_add_u32 m0, s30, {32768}")
        e("s_nop 0")
        cx.emit(("V", f"buffer_load_dwordx4 v11, s[20:23], 0 offen offset:{ii*1024} lds", "B"))
    for i in range(16):
        if i % 2 == 0 and i:
            e("v_add_u32 v9, 0x1000, v9")
        cx.emit(("V", f"buffer_load_dwordx4 v[{A+4*i}:{A+4*i+3}], v9, s[20:23], 0 offen offset:{WS_PQ + (i%2)*2048}", ("h", i)))
        if i == 1:
            for ii in range(4):
                e(f"s_mov_b32 s31, {ii*16384}")
                e(f"s_add_u32 m0, s30, {ii*1024}")
                e("s_nop 0")
                cx.emit(("V", "buffer_load_dwordx4 v10, s[16:19], s31 offen lds", "B"))
    e("s_lshl_b32 s28, s27, 5")
    e("v_add_u32 v4, s28, v2")
    e("v_lshlrev_b32 v4, 10, v4")
    e("v_lshl_add_u32 v4, v3, 3, v4")
    e("s_lshl_b32 s29, s26, 6")
    e("s_lshl_b32 s28, s35, 5")
    e("s_add_u32 s29, s29, s28")
    e("v_add_u32 v4, s29, v4")
    for q in range(2):
        cx.emit(("V", f"buffer_load_dwordx2 v[{XR+2*q}:{XR+2*q+1}], v4, s[12:15], 0 offen offset:{16*q}", "X"))
    e("s_mul_i32 s28, s2, 5504")
    e("v_lshlrev_b32 v9, 4, v0")
    e("v_add_u32 v9, s28, v9")
    for i in range(3):
        cx.emit(("V", f"buffer_load_dwordx4 v[{162+4*i}:{165+4*i}], v9, s[{44+4*i}:{47+4*i}], 0 offen", "PF"))
    tr_parts()
    e("v_lshl_add_u32 v12, v3, 2, v5")
    e("v_lshlrev_b32 v12, 6, v12")
    e("v_lshl_add_u32 v12, v7, 5, v12")
    e("v_lshl_add_u32 v12, v6, 3, v12")
    e("s_lshl_b32 s28, s35, 10")
    e("v_add_u32 v12, s28, v12")

    e("v_lshlrev_b32 v13, 4, v1")
    e("s_lshl_b32 s28, s35, 10")
    e("s_add_u32 s28, s28, 32768")
    e("v_add_u32 v13, s28, v13")

    def kvread(i):
        return [("L", f"ds_read_b128 a[{KV+4*(i%4)}:{KV+4*(i%4)+3}], v13 offset:{i*2048}", ("k", i))]

    def omfma(i):
        d = DS[i % 3]
        cx.vm.wait({("h", i)})
        cx.lg.wait({("k", i)})
        e(f"v_mfma_f32_32x32x16_bf16 v[{d}:{d+15}], a[{KV+4*(i%4)}:{KV+4*(i%4)+3}], v[{A+4*i}:{A+4*i+3}], 0")

    def oproc(i):
        d = DS[i % 3]
        ops = [f"v_add_f32 v{T}, 0x358637bd, v{d+8}", f"v_rcp_f32 v{T}, v{T}", "s_nop 0"]
        for m in range(8):
            ops.append(f"v_mul_f32 v{d+m}, v{d+m}, v{T}")
        for m in range(4):
            ops.append(f"v_cvt_pk_bf16_f32 v{A+4*i+m}, v{d+2*m}, v{d+2*m+1}")
        return ops

    LA, NBUF = 2, 3

    def reads(i):
        b = BFB + 4 * (i % NBUF)
        return [("L", f"ds_read_b64_tr_b16 a[{b}:{b+1}], v12 offset:{i*2048}", ("b", i)),
                ("L", f"ds_read_b64_tr_b16 a[{b+2}:{b+3}], v12 offset:{i*2048+512}", ("b", i))]

    stamp(2, 1)
    cx.vm.wait({"B"})
    e("s_barrier")
    stamp(2, 2)
    for i in range(4):
        cx.emits(kvread(i))
    for i in range(LA):
        cx.emits(reads(i))
    omfma(0)
    omfma(1)
    e("s_nop 7")
    e("s_nop 3")
    for op in oproc(0):
        e(op)
    for i in range(16):
        b = BFB + 4 * (i % NBUF)
        if i + 2 < 16:
            omfma(i + 2)
        if i + 4 < 16:
            cx.emits(kvread(i + 4))
        if i + LA < 16:
            cx.emits(reads(i + LA))
        if i + 1 < 16:
            ops = oproc(i + 1)
            for op in ops[:8]:
                e(op)
        cx.lg.wait({("b", i)})
        cc = "0" if i == 0 else f"v[{ACC}:{ACC+15}]"
        e(f"v_mfma_f32_32x32x16_bf16 v[{ACC}:{ACC+15}], a[{b}:{b+3}], v[{A+4*i}:{A+4*i+3}], {cc}")
        if i + 1 < 16:
            for op in ops[8:]:
                e(op)
    e("s_nop 7")
    e("s_nop 7")
    stamp(2, 3)
    pair_halves(ACC, T, 0)
    cx.vm.wait({"X"})
    for i in range(4):
        x = XR + i
        e(f"v_lshlrev_b32 v{T+8}, 16, v{x}")
        e(f"v_and_b32 v{T+9}, 0xffff0000, v{x}")
        e(f"v_add_f32 v{T+8}, v{T+8}, v{T+2*i}")
        e(f"v_add_f32 v{T+9}, v{T+9}, v{T+2*i+1}")
        e(f"v_cvt_pk_bf16_f32 v{x}, v{T+8}, v{T+9}")
    e("s_lshl_b32 s29, s26, 11")
    e("s_lshl_b32 s28, s35, 10")
    e("s_add_u32 s29, s29, s28")
    e(f"s_add_u32 s29, s29, 0x{WS_H:x}")
    e("v_add_u32 v8, s29, v8")
    e(f"buffer_store_dwordx4 v[{XR}:{XR+3}], v8, s[20:23], 0 offen")
    stamp(2, 4)
    out.append("K2_END:")
    e("s_endpgm")
    return name


def k3():
    global SV
    SV = [206, 207]
    name = "k3_gateup_kernel"
    kernel_begin(name)
    cx = Ctx()
    e("s_cmp_ge_u32 s2, 240")
    e("s_cbranch_scc1 K3_END")
    e("s_load_dwordx2 s[4:5], s[0:1], 32")
    e("s_load_dwordx2 s[6:7], s[0:1], 40")
    e("s_load_dwordx2 s[8:9], s[0:1], 72")
    common_ids()
    wg_map()
    e("s_waitcnt lgkmcnt(0)")
    srd(12, 4, D * F * 2)
    srd(16, 6, D * F * 2)
    srd(20, 8, WS_END)
    stamp_init()
    stamp(3, 0)
    A = 16
    ACC = 80
    T = 176
    DV = 200
    R = 6
    SLOT = 24576
    XS = R * SLOT
    e("s_lshl_b32 s27, s25, 2")
    e("s_add_u32 s27, s27, s34")
    e("s_lshl_b32 s28, s27, 15")
    e("s_lshl_b32 s29, s35, 10")
    e("s_add_u32 s28, s28, s29")
    e(f"s_add_u32 s28, s28, 0x{WS_H:x}")
    e("v_lshlrev_b32 v9, 4, v1")
    e("v_add_u32 v9, s28, v9")
    for n in range(16):
        if n % 2 == 0 and n:
            e("v_add_u32 v9, 0x1000, v9")
        cx.emit(("V", f"buffer_load_dwordx4 v[{A+4*n}:{A+4*n+3}], v9, s[20:23], 0 offen offset:{(n%2)*2048}", "A"))
    e("s_movk_i32 s29, 2752")
    e("s_mov_b32 s28, 43691")
    e("s_mul_i32 s32, s26, 192")
    e("s_lshl_b32 s33, s34, 4")
    for i in range(3):
        d = DV + i
        e(f"v_add_u32 v14, {64*i}, v1")
        e("v_mul_lo_u32 v15, v14, s28")
        e("v_lshrrev_b32 v15, 19, v15")
        e("v_mul_u32_u24 v8, 12, v15")
        e("v_sub_u32 v14, v14, v8")
        e("v_add_u32 v15, s33, v15")
        e(f"v_mul_lo_u32 v{d}, v15, s29")
        e(f"v_lshl_add_u32 v{d}, v14, 4, v{d}")
        e(f"v_add_u32 v{d}, s32, v{d}")
    e("s_mul_i32 s30, s34, 3072")
    e("s_mul_i32 s28, s35, 12288")
    e("s_add_u32 s30, s30, s28")
    e("s_cmp_eq_u32 s35, 0")
    e("s_cselect_b32 s36, s12, s16")
    e("s_cselect_b32 s37, s13, s17")
    e("s_mov_b32 s38, s14")
    e("s_mov_b32 s39, 0x00020000")

    def dma_ops(st):
        ops = []
        for i in range(3):
            ops.append(f"s_mov_b32 s31, {st*64*2752}")
            ops.append(f"s_add_u32 m0, s30, {(st % R)*SLOT + i*1024}")
            ops.append("s_nop 0")
            ops.append(("V", f"buffer_load_dwordx4 v{DV+i}, s[36:39], s31 offen lds", ("B", st)))
        return ops

    tr_parts()
    e("v_lshl_add_u32 v12, v3, 2, v5")
    e("v_mul_u32_u24 v12, 192, v12")
    e("v_lshl_add_u32 v12, v7, 5, v12")
    e("v_lshl_add_u32 v12, v6, 3, v12")
    e("s_mul_i32 s28, s35, 3072")
    e("v_add_u32 v12, s28, v12")
    e("v_add_u32 v13, 0xc000, v12")
    e("v_add_u32 v11, 0x18000, v12")
    for st in range(2):
        cx.emits(dma_ops(st))
    stamp(3, 1)
    cx.vm.wait({"A"})
    stamp(3, 2)
    RS, NB = 14, 15
    s0, s1, q0, q1, ones = T, T + 1, T + 2, T + 3, T + 4
    e(f"v_mov_b32 v{ones}, 0x3f803f80")
    for r in (s0, s1, q0, q1):
        e(f"v_mov_b32 v{r}, 0")
    main = []
    for i in range(64):
        main.append(f"v_dot2c_f32_bf16 v{s0 if i % 2 == 0 else s1}, v{A+i}, v{ones}")
        main.append(f"v_dot2c_f32_bf16 v{q0 if i % 2 == 0 else q1}, v{A+i}, v{A+i}")
    cx.spread(main, [])
    e("s_nop 3")
    e(f"v_add_f32 v{s0}, v{s0}, v{s1}")
    e(f"v_add_f32 v{q0}, v{q0}, v{q1}")
    e(f"v_mov_b32 v{s1}, v{s0}")
    e(f"v_mov_b32 v{q1}, v{q0}")
    e("s_nop 1")
    e(f"v_permlane32_swap_b32 v{s0}, v{s1}")
    e(f"v_permlane32_swap_b32 v{q0}, v{q1}")
    e("s_nop 1")
    e(f"v_add_f32 v{s0}, v{s0}, v{s1}")
    e(f"v_add_f32 v{s1}, v{q0}, v{q1}")
    e("s_lshl_b32 s28, s24, 8")
    e(f"s_add_u32 s28, s28, {XS}")
    e("v_lshlrev_b32 v8, 3, v2")
    e("v_add_u32 v9, s28, v8")
    e("s_xor_b32 s28, s28, 0x400")
    e("v_add_u32 v8, s28, v8")
    e(f"ds_write_b64 v9, v[{s0}:{s1}]")
    e("s_waitcnt lgkmcnt(0)")
    e("s_barrier")
    e(f"ds_read_b64 v[{q0}:{q1}], v8")
    e("s_waitcnt lgkmcnt(0)")
    e(f"v_add_f32 v{s0}, v{s0}, v{q0}")
    e(f"v_add_f32 v{q0}, v{s1}, v{q1}")
    finish_stats(s0, q0, RS, NB, 1)
    for r in range(4):
        cx.emits(ln_apply_ops(A + r, RS, NB, T))

    def reads(n):
        st, t2 = n // 2, n % 2
        sl = st % R
        va = [12, 13, 11][sl // 2]
        base = (sl % 2) * SLOT + t2 * 32 * 192
        b = 24 * (n % 2)
        ops = []
        for p in range(2):
            for u in range(3):
                o = base + p * 12288 + u * 64
                k = (p * 3 + u) * 4
                ops.append(("L", f"ds_read_b64_tr_b16 a[{b+k}:{b+k+1}], v{va} offset:{o}", ("b", n)))
                ops.append(("L", f"ds_read_b64_tr_b16 a[{b+k+2}:{b+k+3}], v{va} offset:{o+8*192}", ("b", n)))
        return ops

    def pre(n):
        if n % 2 == 0:
            cx.vm.wait({("B", n // 2)})
            e("s_barrier")

    stamp(3, 3)
    pre(0)
    cx.emits(reads(0))
    for n in range(16):
        cx.lg.wait({("b", n)})
        fill = []
        if n + 1 < 16:
            pre(n + 1)
            fill += reads(n + 1)
        b = 24 * (n % 2)
        a = f"v[{A+4*n}:{A+4*n+3}]"
        main = []
        for x in range(6):
            cc = "0" if n == 0 else f"v[{ACC+16*x}:{ACC+16*x+15}]"
            main.append(f"v_mfma_f32_32x32x16_bf16 v[{ACC+16*x}:{ACC+16*x+15}], a[{b+4*x}:{b+4*x+3}], {a}, {cc}")
        f2 = []
        if n + 1 < 16:
            for r in range(4):
                f2 += ln_apply_ops(A + 4 * (n + 1) + r, RS, NB, T + 2 * (r & 1))
        st = n // 2
        if n == 0:
            f2 += dma_ops(2)
        if n % 2 == 1 and st + 3 < 8:
            f2 += dma_ops(st + 3)
        cx.spread(main, merge(fill, f2))
    e("s_nop 7")
    e("s_nop 7")
    stamp(3, 4)
    e("s_barrier")
    e("s_lshl_b32 s28, s24, 14")
    e("v_lshlrev_b32 v8, 4, v1")
    e("v_add_u32 v9, s28, v8")
    e("s_xor_b32 s28, s28, 0x10000")
    e("v_add_u32 v8, s28, v8")
    e("s_mul_i32 s28, s27, 88064")
    e("s_mul_i32 s29, s26, 6144")
    e("s_add_u32 s28, s28, s29")
    e(f"s_add_u32 s28, s28, 0x{WS_HH:x}")
    e("v_lshlrev_b32 v10, 4, v1")
    e("v_add_u32 v10, s28, v10")
    G = [ACC, ACC + 16, ACC + 32]
    U = [ACC + 48, ACC + 64, ACC + 80]

    def fin(u):
        for i in range(16):
            e(f"v_mul_f32 v{G[u]+i}, v{G[u]+i}, v{U[u]+i}")
        for q in range(8):
            e(f"v_cvt_pk_bf16_f32 v{U[u]+q}, v{G[u]+2*q}, v{G[u]+2*q+1}")
        e(f"s_movk_i32 s31, {2048*u}")
        for tt in range(2):
            e(f"buffer_store_dwordx4 v[{U[u]+4*tt}:{U[u]+4*tt+3}], v10, s[20:23], s31 offen offset:{1024*tt}")

    e("s_cmp_eq_u32 s35, 0")
    e("s_cbranch_scc0 K3_KP1")
    for i, base in enumerate((G[2], U[2])):
        for q in range(4):
            e(f"ds_write_b128 v9, v[{base+4*q}:{base+4*q+3}] offset:{(4*i+q)*1024}")
    e("s_waitcnt lgkmcnt(0)")
    e("s_barrier")
    for i in range(16):
        e(f"ds_read_b128 v[{A+4*i}:{A+4*i+3}], v8 offset:{i*1024}")
    for i, base in enumerate((G[0], U[0], G[1], U[1])):
        e(f"s_waitcnt lgkmcnt({12-4*i})")
        for q in range(16):
            e(f"v_add_f32 v{base+q}, v{base+q}, v{A+16*i+q}")
    fin(0)
    e("s_cmp_ge_u32 s26, 14")
    e("s_cbranch_scc1 K3_END")
    fin(1)
    stamp(3, 5)
    e("s_branch K3_END")
    out.append("K3_KP1:")
    for i, base in enumerate((G[0], U[0], G[1], U[1])):
        for q in range(4):
            e(f"ds_write_b128 v9, v[{base+4*q}:{base+4*q+3}] offset:{(4*i+q)*1024}")
    e("s_waitcnt lgkmcnt(0)")
    e("s_barrier")
    e("s_cmp_ge_u32 s26, 14")
    e("s_cbranch_scc1 K3_END")
    for i in range(8):
        e(f"ds_read_b128 v[{A+4*i}:{A+4*i+3}], v8 offset:{i*1024}")
    for i, base in enumerate((G[2], U[2])):
        e(f"s_waitcnt lgkmcnt({4-4*i})")
        for q in range(16):
            e(f"v_add_f32 v{base+q}, v{base+q}, v{A+16*i+q}")
    fin(2)
    stamp(3, 5)
    out.append("K3_END:")
    e("s_endpgm")
    return name


def k4():
    global SV
    SV = [62, 63]
    name = NAME + "_kernel"
    kernel_begin(name)
    cx = Ctx()
    e("s_cmp_ge_u32 s2, 256")
    e("s_cbranch_scc1 K4_END")
    e("s_load_dwordx2 s[4:5], s[0:1], 48")
    e("s_load_dwordx2 s[6:7], s[0:1], 56")
    e("s_load_dwordx2 s[8:9], s[0:1], 72")
    common_ids()
    e("s_and_b32 s25, s2, 7")
    e("s_lshl_b32 s25, s25, 2")
    e("s_bfe_u32 s26, s2, 0x20003")
    e("s_or_b32 s25, s25, s26")
    e("s_lshr_b32 s26, s2, 5")
    e("s_and_b32 s32, s24, 1")
    e("s_bfe_u32 s33, s24, 0x10001")
    e("s_waitcnt lgkmcnt(0)")
    srd(12, 4, F * D * 2)
    srd(16, 6, S * D * 2)
    srd(20, 8, WS_END)
    stamp_init()
    stamp(4, 0)
    NK = F // 16
    SL = 8
    NST = (NK + SL - 1) // SL
    R = 4
    SLOT = 32768
    ACC = 16
    XR = 32
    T = 40
    LA = 2
    NBUF = 3
    AFR = 0
    BFR = 4 * NBUF
    e("s_lshl_b32 s27, s25, 1")
    e("s_add_u32 s27, s27, s32")
    e("s_lshl_b32 s28, s27, 15")
    e("s_lshl_b32 s29, s26, 12")
    e("s_add_u32 s28, s28, s29")
    e("s_lshl_b32 s29, s33, 11")
    e("s_add_u32 s28, s28, s29")
    e("s_lshl_b32 s29, s35, 10")
    e("s_add_u32 s28, s28, s29")
    e(f"s_add_u32 s28, s28, 0x{WS_H:x}")
    e("v_lshlrev_b32 v14, 4, v1")
    e("v_add_u32 v14, s28, v14")
    cx.emit(("V", f"buffer_load_dwordx4 v[{XR}:{XR+3}], v14, s[20:23], 0 offen", "R"))
    e("s_mul_i32 s28, s27, 88064")
    e("s_lshr_b32 s29, s24, 1")
    e("s_lshl_b32 s29, s29, 11")
    e("s_add_u32 s28, s28, s29")
    e(f"s_add_u32 s28, s28, 0x{WS_HH:x}")
    e("v_lshlrev_b32 v15, 4, v1")
    e("v_add_u32 v15, s28, v15")
    e("s_lshl_b32 s36, s32, 13")
    e("s_add_u32 s36, s36, s29")
    e("v_lshrrev_b32 v10, 3, v1")
    e("v_and_b32 v11, 7, v1")
    e("v_bfe_u32 v8, v10, 1, 1")
    e("v_lshlrev_b32 v8, 2, v8")
    e("v_xor_b32 v11, v11, v8")
    e("s_lshl_b32 s28, s24, 4")
    e("v_add_u32 v10, s28, v10")
    e("v_lshlrev_b32 v10, 10, v10")
    e("v_lshl_add_u32 v10, v11, 4, v10")
    e("s_lshl_b32 s29, s26, 7")
    e("v_add_u32 v10, s29, v10")
    e("s_lshl_b32 s30, s24, 11")
    e("s_add_u32 s30, s30, 16384")

    def dma_ops(st):
        ops = []
        sl = (st % R) * SLOT
        for i in range(2):
            ops.append(f"s_mov_b32 s31, {st*SL*1024 + i*1024}")
            ops.append(f"s_add_u32 m0, s36, {sl + i*1024}")
            ops.append("s_nop 0")
            ops.append(("V", "buffer_load_dwordx4 v15, s[20:23], s31 offen lds", ("B", st)))
            ops.append(f"s_mov_b32 s31, {(st*128 + 8*i)*1024}")
            ops.append(f"s_add_u32 m0, s30, {sl + i*1024}")
            ops.append("s_nop 0")
            ops.append(("V", "buffer_load_dwordx4 v10, s[12:15], s31 offen lds", ("B", st)))
        return ops

    for st in range(3):
        cx.emits(dma_ops(st))
    tr_parts()
    e("v_lshl_add_u32 v12, v3, 2, v5")
    e("v_lshlrev_b32 v12, 7, v12")
    e("v_lshrrev_b32 v8, 1, v5")
    e("v_xor_b32 v8, s33, v8")
    e("v_lshl_add_u32 v12, v8, 6, v12")
    e("v_lshl_add_u32 v12, v7, 5, v12")
    e("v_lshl_add_u32 v12, v6, 3, v12")
    e("s_lshl_b32 s28, s35, 11")
    e("s_add_u32 s28, s28, 0x4000")
    e("v_add_u32 v12, s28, v12")
    e("v_add_u32 v13, 0x10000, v12")
    e("s_lshl_b32 s28, s32, 13")
    e("s_lshl_b32 s29, s35, 10")
    e("s_add_u32 s28, s28, s29")
    e("v_lshlrev_b32 v4, 4, v1")
    e("v_add_u32 v4, s28, v4")
    e("v_add_u32 v9, 0x10000, v4")
    stamp(4, 1)
    NL = NK // 2

    def reads(n):
        st, t2 = n // 4, n % 4
        sl = st % R
        hi = sl >= 2
        base = (sl % 2) * SLOT
        af = AFR + 4 * (n % NBUF)
        bf = BFR + 4 * (n % NBUF)
        return [("L", f"ds_read_b128 a[{af}:{af+3}], v{9 if hi else 4} offset:{base + t2*2048}", ("b", n)),
                ("L", f"ds_read_b64_tr_b16 a[{bf}:{bf+1}], v{13 if hi else 12} offset:{base + t2*4096}", ("b", n)),
                ("L", f"ds_read_b64_tr_b16 a[{bf+2}:{bf+3}], v{13 if hi else 12} offset:{base + t2*4096 + 1024}", ("b", n))]

    def pre(n):
        if n % 4 == 0:
            cx.vm.wait({("B", n // 4)})
            e("s_barrier")

    for n in range(LA):
        pre(n)
        cx.emits(reads(n))
    for n in range(NL):
        cx.lg.wait({("b", n)})
        af = AFR + 4 * (n % NBUF)
        bf = BFR + 4 * (n % NBUF)
        cc = "0" if n == 0 else f"v[{ACC}:{ACC+15}]"
        if n + LA < NL:
            pre(n + LA)
        e(f"v_mfma_f32_32x32x16_bf16 v[{ACC}:{ACC+15}], a[{bf}:{bf+3}], a[{af}:{af+3}], {cc}")
        if n + LA < NL:
            cx.emits(reads(n + LA))
        st, t2 = n // 4, n % 4
        if t2 >= 2 and st + 3 < NST:
            ops = dma_ops(st + 3)
            cx.emits(ops[(t2 - 2) * 8:(t2 - 2) * 8 + 8])
    e("s_nop 7")
    e("s_nop 7")
    stamp(4, 3)
    pair_halves(ACC, T, 0)
    cx.vm.wait({"R"})
    for i in range(4):
        x = XR + i
        e(f"v_lshlrev_b32 v{T+8}, 16, v{x}")
        e(f"v_and_b32 v{T+9}, 0xffff0000, v{x}")
        e(f"v_add_f32 v{T+8}, v{T+8}, v{T+2*i}")
        e(f"v_add_f32 v{T+9}, v{T+9}, v{T+2*i+1}")
        e(f"v_cvt_pk_bf16_f32 v{x}, v{T+8}, v{T+9}")
    e("s_lshl_b32 s28, s27, 5")
    e("v_add_u32 v8, s28, v2")
    e("v_lshlrev_b32 v9, 10, v8")
    e("v_lshl_add_u32 v9, v3, 3, v9")
    e("s_lshl_b32 s29, s26, 7")
    e("s_lshl_b32 s28, s33, 6")
    e("s_add_u32 s29, s29, s28")
    e("s_lshl_b32 s28, s35, 5")
    e("s_add_u32 s29, s29, s28")
    e("v_add_u32 v9, s29, v9")
    for q in range(2):
        e(f"buffer_store_dwordx2 v[{XR+2*q}:{XR+2*q+1}], v9, s[16:19], 0 offen offset:{16*q}")
    stamp(4, 4)
    out.append("K4_END:")
    e("s_endpgm")
    return name


def main():
    hdr = open("cdna_kernels/%s.s.ref" % NAME).read().splitlines()
    for l in hdr:
        if "@launch" in l and "grid=(4096" in l:
            break
        out.append(l.replace("@launch", "launch"))
    out.append("; @launch kernel=k1_qkv_kernel grid=(256,1,1) block=(512,1,1) lds=133120")
    out.append("; @launch kernel=kr_reduce_kernel grid=(32,1,1) block=(256,1,1) lds=0")
    out.append("; @launch kernel=k2_attnout_kernel grid=(256,1,1) block=(512,1,1) lds=65536")
    out.append("; @launch kernel=k3_gateup_kernel grid=(240,1,1) block=(512,1,1) lds=149504")
    out.append(f"; @launch kernel={NAME}_kernel grid=(256,1,1) block=(512,1,1) lds=131072")
    out.append('.amdgcn_target "amdgcn-amd-amdhsa--gfx950"')
    out.append(".text")
    n1 = k1()
    nr = kr()
    n2 = k2()
    n3 = k3()
    n4 = k4()
    out.append('.section .rodata,"a"')
    kdesc(n1, 216, 176)
    kdesc(nr, 64, 64)
    kdesc(n2, 208, 176)
    kdesc(n3, 256, 208)
    kdesc(n4, 96, 64)
    path = sys.argv[1] if len(sys.argv) > 1 else "cdna_kernels/%s.s" % NAME
    open(path, "w").write("\n".join(out) + "\n")


main()
```

```python
import sys, os

NAME = "sequential_preLN__linear_attn_block__glu_gated_bilinear__prompt"
S, D, F = 2048, 512, 1376
WS_PQ = 0x000000
WS_PART = 0x200000
WS_KVZ = 0x300000
WS_H = 0x400000
WS_HH = 0x600000
WS_END = 0x600000 + S * F * 2
STAMP = len(sys.argv) > 2 and sys.argv[2] == "stamp"
WS_STAMP = 0xF000000

out = []


def e(s=""):
    out.append("    " + s if s and not s.endswith(":") else s)


def srd(base, ptr, size):
    e(f"s_mov_b32 s{base}, s{ptr}")
    e(f"s_mov_b32 s{base+1}, s{ptr+1}")
    e(f"s_mov_b32 s{base+2}, 0x{size:x}")
    e(f"s_mov_b32 s{base+3}, 0x00020000")


def kernel_begin(name):
    out.append(".p2align 8")
    out.append(f".globl {name}")
    out.append(f".type {name},@function")
    out.append(f"{name}:")


def kdesc(name, vgpr, accum, sgpr=96):
    out.append(".p2align 6")
    out.append(f".amdhsa_kernel {name}")
    out.append(f"  .amdhsa_next_free_vgpr {vgpr}")
    out.append(f"  .amdhsa_next_free_sgpr {sgpr}")
    out.append(f"  .amdhsa_accum_offset {accum}")
    out.append("  .amdhsa_group_segment_fixed_size 0")
    out.append("  .amdhsa_kernarg_size 80")
    out.append("  .amdhsa_user_sgpr_count 2")
    out.append("  .amdhsa_user_sgpr_kernarg_segment_ptr 1")
    out.append("  .amdhsa_system_sgpr_workgroup_id_x 1")
    out.append(".end_amdhsa_kernel")


SV = [14, 15]


def stamp(kidx, n):
    if not STAMP:
        return
    a, b = SV
    e("s_memtime s[60:61]")
    e("s_memrealtime s[68:69]")
    e("s_waitcnt lgkmcnt(0)")
    e(f"v_mov_b32 v{a}, s60")
    e("s_lshl_b32 s62, s2, 3")
    e("s_add_u32 s62, s62, s24")
    e("s_lshl_b32 s62, s62, 5")
    e(f"s_add_u32 s62, s62, {WS_STAMP + kidx*0x10000}")
    e(f"v_mov_b32 v{b}, s62")
    e(f"buffer_store_dword v{a}, v{b}, s[64:67], 0 offen offset:{n*4}")
    e(f"v_mov_b32 v{a}, s68")
    e(f"buffer_store_dword v{a}, v{b}, s[64:67], 0 offen offset:{24 if n == 0 else 28}")


def stamp_init():
    if STAMP:
        srd(64, 8, 0x10000000)


def common_ids():
    e("v_and_b32 v1, 63, v0")
    e("v_lshrrev_b32 v4, 6, v0")
    e("s_nop 0")
    e("v_readfirstlane_b32 s24, v4")
    e("v_and_b32 v2, 31, v1")
    e("v_lshrrev_b32 v3, 5, v1")
    e("s_and_b32 s34, s24, 3")
    e("s_lshr_b32 s35, s24, 2")


def wg_map():
    e("s_and_b32 s25, s2, 7")
    e("s_lshl_b32 s25, s25, 1")
    e("s_bfe_u32 s26, s2, 0x10003")
    e("s_or_b32 s25, s25, s26")
    e("s_lshr_b32 s26, s2, 4")


def tr_parts():
    e("v_bfe_u32 v5, v1, 2, 2")
    e("v_and_b32 v6, 3, v1")
    e("v_bfe_u32 v7, v1, 4, 1")


def ln_apply_ops(reg, rs, nb, t0):
    lo, hi = t0, t0 + 1
    return [
        f"v_lshlrev_b32 v{lo}, 16, v{reg}",
        f"v_and_b32 v{hi}, 0xffff0000, v{reg}",
        f"v_fma_f32 v{lo}, v{lo}, v{rs}, v{nb}",
        f"v_fma_f32 v{hi}, v{hi}, v{rs}, v{nb}",
        f"v_cvt_pk_bf16_f32 v{reg}, v{lo}, v{hi}",
    ]


def ln_apply4(base, rs, nb, t0):
    ops = []
    for r in range(4):
        ops.append(f"v_lshlrev_b32 v{t0+2*r}, 16, v{base+r}")
    for r in range(4):
        ops.append(f"v_and_b32 v{t0+2*r+1}, 0xffff0000, v{base+r}")
    for r in range(4):
        ops.append(f"v_fma_f32 v{t0+2*r}, v{t0+2*r}, v{rs}, v{nb}")
    for r in range(4):
        ops.append(f"v_fma_f32 v{t0+2*r+1}, v{t0+2*r+1}, v{rs}, v{nb}")
    for r in range(4):
        ops.append(f"v_cvt_pk_bf16_f32 v{base+r}, v{t0+2*r}, v{t0+2*r+1}")
    return ops


def phi_ops(regs, tmp):
    for i, r in enumerate(regs):
        e(f"v_mul_f32 v{tmp+i}, 0x3fb8aa3b, v{r}")
    for i, r in enumerate(regs):
        e(f"v_min_f32 v{tmp+i}, 0, v{tmp+i}")
    for i, r in enumerate(regs):
        e(f"v_exp_f32 v{tmp+i}, v{tmp+i}")
    for i, r in enumerate(regs):
        e(f"v_max_f32 v{r}, 0, v{r}")
    for i, r in enumerate(regs):
        e(f"v_add_f32 v{tmp+i}, 0x358637bd, v{tmp+i}")
    for i, r in enumerate(regs):
        e(f"v_add_f32 v{r}, v{r}, v{tmp+i}")


class Cnt:
    def __init__(self, name, cap):
        self.q, self.name, self.cap = [], name, cap

    def issue(self, tag):
        self.q.append(tag)

    def wait(self, tags):
        idx = -1
        for i, t in enumerate(self.q):
            if t in tags:
                idx = i
        if idx < 0:
            return
        n = min(len(self.q) - 1 - idx, self.cap)
        e(f"s_waitcnt {self.name}({n})")
        self.q = self.q[len(self.q) - n:] if n else []


class Ctx:
    def __init__(self):
        self.vm = Cnt("vmcnt", 63)
        self.lg = Cnt("lgkmcnt", 15)

    def emit(self, op):
        if isinstance(op, tuple):
            e(op[1])
            (self.vm if op[0] == "V" else self.lg).issue(op[2])
        else:
            e(op)

    def emits(self, ops):
        for op in ops:
            self.emit(op)

    def spread(self, main, fill):
        n = len(main)
        k = 0
        for i, mm in enumerate(main):
            e(mm)
            tgt = (len(fill) * (i + 1)) // n
            while k < tgt:
                self.emit(fill[k])
                k += 1


def merge(a, b):
    o = []
    i = j = 0
    while i < len(a) or j < len(b):
        if j >= len(b) or (i < len(a) and i * len(b) <= j * len(a)):
            o.append(a[i]); i += 1
        else:
            o.append(b[j]); j += 1
    return o


def finish_stats(sm, qm, rs, nb, n):
    for m in range(n):
        e(f"v_mul_f32 v{sm+m}, 0x3b000000, v{sm+m}")
        e(f"v_mul_f32 v{qm+m}, 0x3b000000, v{qm+m}")
    for m in range(n):
        e(f"v_fma_f32 v{qm+m}, -v{sm+m}, v{sm+m}, v{qm+m}")
    for m in range(n):
        e(f"v_max_f32 v{qm+m}, 0, v{qm+m}")
    for m in range(n):
        e(f"v_add_f32 v{qm+m}, 0x3727c5ac, v{qm+m}")
    for m in range(n):
        e(f"v_rsq_f32 v{rs+m}, v{qm+m}")
    e("s_nop 0")
    for m in range(n):
        e(f"v_mul_f32 v{nb+m}, v{sm+m}, v{rs+m}")
    for m in range(n):
        e(f"v_sub_f32 v{nb+m}, 0, v{nb+m}")


def k1():
    global SV
    name = "k1_qkv_kernel"
    kernel_begin(name)
    cx = Ctx()
    SV = [174, 175]
    e("s_cmp_ge_u32 s2, 256")
    e("s_cbranch_scc1 K1_END")
    e("s_load_dwordx2 s[4:5], s[0:1], 0")
    e("s_load_dwordx2 s[6:7], s[0:1], 8")
    e("s_load_dwordx2 s[8:9], s[0:1], 72")
    e("s_load_dwordx2 s[10:11], s[0:1], 16")
    common_ids()
    wg_map()
    e("s_waitcnt lgkmcnt(0)")
    srd(12, 4, S * D * 2)
    srd(16, 6, D * 3 * D * 2)
    srd(20, 8, WS_END)
    srd(44, 10, D * D * 2)
    stamp_init()
    stamp(0, 0)
    A = 16
    ACQ, ACK, ACV = 80, 96, 112
    WA, RA, RSN = 128, 132, 136
    T = 144
    AF = 0
    BFB = 16
    XS = 131072
    e("s_lshl_b32 s27, s25, 7")
    e("s_lshl_b32 s28, s34, 5")
    e("s_add_u32 s27, s27, s28")
    e("v_lshrrev_b32 v8, 3, v1")
    e("v_and_b32 v11, 7, v1")
    e("v_add_u32 v9, s27, v8")
    e("v_lshlrev_b32 v9, 10, v9")
    e("v_lshl_add_u32 v9, v11, 4, v9")
    e("s_lshl_b32 s28, s35, 7")
    e("v_add_u32 v9, s28, v9")
    for cc in range(4):
        for m in range(4):
            e(f"s_mov_b32 s31, {m*8192}")
            r = A + (m * 4 + cc) * 4
            cx.emit(("V", f"buffer_load_dwordx4 v[{r}:{r+3}], v9, s[12:15], s31 offen offset:{256*cc}", "A"))
    e("v_lshrrev_b32 v10, 2, v1")
    e("s_lshl_b32 s28, s24, 4")
    e("v_add_u32 v10, s28, v10")
    e("s_movk_i32 s29, 3072")
    e("v_mul_lo_u32 v10, v10, s29")
    e("v_and_b32 v14, 3, v1")
    e("v_lshl_add_u32 v10, v14, 4, v10")
    e("s_lshl_b32 s29, s26, 6")
    e("v_add_u32 v10, s29, v10")
    e("s_lshl_b32 s30, s24, 10")

    def dma(qq):
        ops = []
        for p in range(3):
            ops.append(f"s_mov_b32 s31, {p*1024 + 128*qq*3072}")
            ops.append(f"s_add_u32 m0, s30, {p*32768 + 128*qq*64}")
            ops.append("s_nop 0")
            ops.append(("V", "buffer_load_dwordx4 v10, s[16:19], s31 offen lds", ("B", qq)))
        return ops
    for qq in range(2):
        cx.emits(dma(qq))
    tr_parts()
    e("v_lshl_add_u32 v12, v3, 3, v5")
    e("v_lshlrev_b32 v12, 6, v12")
    e("v_lshl_add_u32 v12, v7, 5, v12")
    e("v_lshl_add_u32 v12, v6, 3, v12")
    e("v_add_u32 v13, 0x10000, v12")
    e("s_lshl_b32 s28, s24, 12")
    e("s_add_u32 s28, s28, 98304")
    for m in range(4):
        e(f"v_add_u32 v14, {8*m}, v8")
        e("v_bfe_u32 v15, v14, 1, 3")
        e("v_xor_b32 v15, v15, v11")
        e("v_lshlrev_b32 v15, 4, v15")
        e(f"v_lshl_add_u32 v{WA+m}, v14, 7, v15")
        e(f"v_add_u32 v{WA+m}, s28, v{WA+m}")
    for t in range(4):
        e(f"v_add_u32 v14, {2*t}, v3")
        e("v_bfe_u32 v15, v2, 1, 3")
        e("v_xor_b32 v15, v15, v14")
        e("v_lshlrev_b32 v15, 4, v15")
        e(f"v_lshl_add_u32 v{RA+t}, v2, 7, v15")
        e(f"v_add_u32 v{RA+t}, s28, v{RA+t}")
    stamp(0, 1)
    cx.vm.wait({"A"})
    stamp(0, 2)
    SM, QM, ONE = T, T + 4, T + 8
    e(f"v_mov_b32 v{ONE}, 0x3f803f80")
    for m in range(4):
        e(f"v_mov_b32 v{SM+m}, 0")
        e(f"v_mov_b32 v{QM+m}, 0")
    for cc in range(4):
        for r in range(4):
            for m in range(4):
                reg = A + (m * 4 + cc) * 4 + r
                e(f"v_dot2c_f32_bf16 v{SM+m}, v{reg}, v{ONE}")
                e(f"v_dot2c_f32_bf16 v{QM+m}, v{reg}, v{reg}")
    e("s_nop 3")
    for dpp in ("quad_perm:[1,0,3,2]", "quad_perm:[2,3,0,1]", "row_half_mirror"):
        for i in range(8):
            e(f"v_add_f32_dpp v{T+i}, v{T+i}, v{T+i} {dpp} row_mask:0xf bank_mask:0xf")
        e("s_nop 1")
    e("s_lshl_b32 s28, s24, 8")
    e(f"s_add_u32 s28, s28, {XS}")
    e("v_lshlrev_b32 v14, 3, v8")
    e("v_add_u32 v14, s28, v14")
    e("s_xor_b32 s28, s28, 0x400")
    e("v_lshlrev_b32 v15, 3, v8")
    e("v_add_u32 v15, s28, v15")
    for m in range(4):
        e(f"v_mov_b32 v{T+10+2*m}, v{SM+m}")
        e(f"v_mov_b32 v{T+11+2*m}, v{QM+m}")
    for m in range(4):
        e(f"ds_write_b64 v14, v[{T+10+2*m}:{T+11+2*m}] offset:{64*m}")
    e("s_waitcnt lgkmcnt(0)")
    e("s_barrier")
    for m in range(4):
        e(f"ds_read_b64 v[{T+10+2*m}:{T+11+2*m}], v15 offset:{64*m}")
    e("s_waitcnt lgkmcnt(0)")
    for m in range(4):
        e(f"v_add_f32 v{SM+m}, v{SM+m}, v{T+10+2*m}")
        e(f"v_add_f32 v{QM+m}, v{QM+m}, v{T+11+2*m}")
    finish_stats(SM, QM, RSN, RSN + 4, 4)

    def nw_ops(cc, m):
        ops = []
        base = A + (m * 4 + cc) * 4
        ops += ln_apply4(base, RSN + m, RSN + 4 + m, T + 20)
        ops.append(("L", f"ds_write_b128 v{WA+m}, v[{base}:{base+3}]", ("w", cc)))
        return ops

    def rd_ops(cc):
        return [("L", f"ds_read_b128 a[{AF+4*t}:{AF+4*t+3}], v{RA+t}", ("a", cc)) for t in range(4)]

    e("s_lshl_b32 s28, s35, 12")
    e("v_add_u32 v12, s28, v12")
    e("v_add_u32 v13, s28, v13")

    def reads(n):
        cc, t = n // 4, n % 4
        j0 = 8 * cc + t
        b = BFB + 12 * (n % 2)
        ops = []
        for (va, off, k) in ((12, j0*1024, 0), (12, j0*1024+256, 2), (12, 32768+j0*1024, 4),
                             (12, 32768+j0*1024+256, 6), (13, j0*1024, 8), (13, j0*1024+256, 10)):
            ops.append(("L", f"ds_read_b64_tr_b16 a[{b+k}:{b+k+1}], v{va} offset:{off}", ("b", n)))
        return ops

    def pre(n):
        if n % 4 == 0:
            cx.vm.wait({("B", n // 4)})
            e("s_barrier")

    for m in range(4):
        cx.emits(nw_ops(0, m))
    cx.emits(rd_ops(0))
    stamp(0, 3)
    pre(0)
    cx.emits(reads(0))
    for n in range(16):
        cc, t = n // 4, n % 4
        b = BFB + 12 * (n % 2)
        cx.lg.wait({("b", n), ("a", cc)})
        fill = []
        if n + 1 < 16:
            pre(n + 1)
            fill += reads(n + 1)
        a = f"a[{AF+4*t}:{AF+4*t+3}]"
        cq = "0" if n == 0 else f"v[{ACQ}:{ACQ+15}]"
        ck = "0" if n == 0 else f"v[{ACK}:{ACK+15}]"
        cv = "0" if n == 0 else f"v[{ACV}:{ACV+15}]"
        main = [
            f"v_mfma_f32_32x32x16_bf16 v[{ACQ}:{ACQ+15}], a[{b}:{b+3}], {a}, {cq}",
            f"v_mfma_f32_32x32x16_bf16 v[{ACK}:{ACK+15}], {a}, a[{b+4}:{b+7}], {ck}",
            f"v_mfma_f32_32x32x16_bf16 v[{ACV}:{ACV+15}], {a}, a[{b+8}:{b+11}], {cv}",
        ]
        f2 = []
        if cc + 1 < 4:
            f2 += nw_ops(cc + 1, t)
        if n in (0, 4):
            f2 += dma(2 + n // 4)
        cx.spread(main, merge(fill, f2))
        if t == 3 and cc + 1 < 4:
            cx.emits(rd_ops(cc + 1))
    e("s_lshl_b32 s28, s2, 11")
    e("v_lshlrev_b32 v14, 2, v0")
    e("v_add_u32 v14, s28, v14")
    e("buffer_load_dword v13, v14, s[44:47], 0 offen")
    e("s_nop 7")
    e("s_nop 7")
    stamp(0, 4)
    e("s_barrier")
    e("s_lshl_b32 s28, s24, 13")
    e("v_lshlrev_b32 v14, 4, v1")
    e("v_add_u32 v14, s28, v14")
    e("s_xor_b32 s28, s28, 0x8000")
    e("v_lshlrev_b32 v15, 4, v1")
    e("v_add_u32 v15, s28, v15")
    e("s_cmp_eq_u32 s35, 0")
    e("s_cbranch_scc0 K1_KP1")
    for i in range(4):
        e(f"ds_write_b128 v14, v[{ACQ+4*i}:{ACQ+4*i+3}] offset:{1024*i}")
    e("s_waitcnt lgkmcnt(0)")
    e("s_barrier")
    for i in range(8):
        e(f"ds_read_b128 v[{A+4*i}:{A+4*i+3}], v15 offset:{1024*i}")
    e("s_waitcnt lgkmcnt(0)")
    for i in range(32):
        e(f"v_add_f32 v{ACK+i}, v{ACK+i}, v{A+i}")
    phi_ops([ACK + i for i in range(16)], T)
    PK, VV, ON = A, A + 8, A + 16
    for m in range(8):
        e(f"v_cvt_pk_bf16_f32 v{PK+m}, v{ACK+2*m}, v{ACK+2*m+1}")
        e(f"v_cvt_pk_bf16_f32 v{VV+m}, v{ACV+2*m}, v{ACV+2*m+1}")
    for m in range(4):
        e(f"v_mov_b32 v{ON+m}, 0x3f803f80")
    e("s_nop 1")
    DKV, DZ = ACQ, ACK
    e(f"v_mfma_f32_32x32x16_bf16 v[{DKV}:{DKV+15}], v[{PK}:{PK+3}], v[{VV}:{VV+3}], 0")
    e(f"v_mfma_f32_32x32x16_bf16 v[{DZ}:{DZ+15}], v[{PK}:{PK+3}], v[{ON}:{ON+3}], 0")
    e(f"v_mfma_f32_32x32x16_bf16 v[{DKV}:{DKV+15}], v[{PK+4}:{PK+7}], v[{VV+4}:{VV+7}], v[{DKV}:{DKV+15}]")
    e(f"v_mfma_f32_32x32x16_bf16 v[{DZ}:{DZ+15}], v[{PK+4}:{PK+7}], v[{ON}:{ON+3}], v[{DZ}:{DZ+15}]")
    e("s_mul_i32 s29, s34, 2304")
    e("s_add_u32 s29, s29, 98304")
    e("v_and_b32 v5, 15, v1")
    e("v_lshlrev_b32 v5, 2, v5")
    e("v_lshl_add_u32 v5, v7, 10, v5")
    e("v_lshl_add_u32 v5, v3, 8, v5")
    e("v_add_u32 v5, s29, v5")
    e("v_cmp_ne_u32 vcc, 0, v7")
    e("s_nop 7")
    e("s_nop 7")
    for m in range(8):
        e(f"v_cndmask_b32 v{T+m}, v{DKV+m}, v{DKV+8+m}, vcc")
    for m in range(8):
        e(f"ds_write_b32 v5, v{T+m} offset:{(m&3)*64 + (m>>2)*512}")
    e("v_lshlrev_b32 v6, 4, v3")
    e("v_add_u32 v6, s29, v6")
    e("v_add_u32 v6, 2048, v6")
    e("s_mov_b32 s40, 1")
    e("s_mov_b32 s41, 1")
    e("s_mov_b64 exec, s[40:41]")
    for r in range(16):
        e(f"ds_write_b32 v6, v{DZ+r} offset:{(r&3)*4 + (r>>2)*32}")
    e("s_mov_b64 exec, -1")
    e("s_waitcnt lgkmcnt(0)")
    e("s_barrier")
    e("s_branch K1_SUM")
    out.append("K1_KP1:")
    for i in range(8):
        e(f"ds_write_b128 v14, v[{ACK+4*i}:{ACK+4*i+3}] offset:{1024*i}")
    e("s_waitcnt lgkmcnt(0)")
    e("s_barrier")
    for i in range(4):
        e(f"ds_read_b128 v[{A+4*i}:{A+4*i+3}], v15 offset:{1024*i}")
    e("s_waitcnt lgkmcnt(0)")
    for i in range(16):
        e(f"v_add_f32 v{ACQ+i}, v{ACQ+i}, v{A+i}")
    phi_ops([ACQ + i for i in range(16)], T)
    e("s_lshl_b32 s27, s25, 2")
    e("s_add_u32 s27, s27, s34")
    e("s_lshl_b32 s27, s27, 15")
    e("s_lshl_b32 s29, s26, 11")
    e("s_add_u32 s27, s27, s29")
    e("v_lshlrev_b32 v9, 4, v1")
    e("v_add_u32 v9, s27, v9")
    for q in range(8):
        e(f"v_cvt_pk_bf16_f32 v{T+q}, v{ACQ+2*q}, v{ACQ+2*q+1}")
    for t in range(2):
        e(f"buffer_store_dwordx4 v[{T+4*t}:{T+4*t+3}], v9, s[20:23], 0 offen offset:{WS_PQ + 1024*t}")
    e("s_barrier")
    out.append("K1_SUM:")
    e("v_lshlrev_b32 v5, 2, v0")
    e("v_add_u32 v5, 98304, v5")
    for w in range(4):
        e(f"ds_read_b32 v{T+16+w}, v5 offset:{w*2304}")
    e("v_cmp_gt_u32 vcc, 32, v0")
    e("s_and_saveexec_b64 s[40:41], vcc")
    for w in range(4):
        e(f"ds_read_b32 v{T+20+w}, v5 offset:{w*2304+2048}")
    e("s_mov_b64 exec, s[40:41]")
    e("s_lshl_b32 s29, s25, 5")
    e("s_lshl_b32 s30, s26, 1")
    e("s_add_u32 s29, s29, s30")
    e("s_mul_i32 s29, s29, 1088")
    e(f"s_add_u32 s29, s29, 0x{WS_PART:x}")
    e("v_lshrrev_b32 v6, 8, v0")
    e("v_lshlrev_b32 v6, 6, v6")
    e("v_lshl_add_u32 v6, v0, 2, v6")
    e("v_add_u32 v6, s29, v6")
    e("s_waitcnt lgkmcnt(0)")
    e(f"v_add_f32 v{T+16}, v{T+16}, v{T+17}")
    e(f"v_add_f32 v{T+18}, v{T+18}, v{T+19}")
    e(f"v_add_f32 v{T+16}, v{T+16}, v{T+18}")
    e(f"buffer_store_dword v{T+16}, v6, s[20:23], 0 offen")
    stamp(0, 5)
    e("v_cmp_gt_u32 vcc, 32, v0")
    e("s_and_saveexec_b64 s[40:41], vcc")
    e("s_cbranch_execz K1_END")
    e(f"v_add_f32 v{T+20}, v{T+20}, v{T+21}")
    e(f"v_add_f32 v{T+22}, v{T+22}, v{T+23}")
    e(f"v_add_f32 v{T+20}, v{T+20}, v{T+22}")
    e("v_lshrrev_b32 v6, 4, v0")
    e("v_mul_u32_u24 v6, 1088, v6")
    e("v_and_b32 v7, 15, v0")
    e("v_lshl_add_u32 v6, v7, 2, v6")
    e("v_add_u32 v6, s29, v6")
    e(f"buffer_store_dword v{T+20}, v6, s[20:23], 0 offen offset:1024")
    out.append("K1_END:")
    e("s_endpgm")
    return name


def kr():
    global SV
    SV = [60, 61]
    name = "kr_reduce_kernel"
    kernel_begin(name)
    e("s_cmp_ge_u32 s2, 32")
    e("s_cbranch_scc1 KR_END")
    e("s_load_dwordx2 s[8:9], s[0:1], 72")
    e("v_lshrrev_b32 v4, 6, v0")
    e("s_nop 0")
    e("v_readfirstlane_b32 s24, v4")
    e("s_waitcnt lgkmcnt(0)")
    srd(20, 8, WS_END)
    stamp_init()
    stamp(1, 0)
    e("s_mul_i32 s25, s2, 1088")
    e(f"s_add_u32 s25, s25, 0x{WS_PART:x}")
    e("v_lshlrev_b32 v1, 2, v0")
    e("v_add_u32 v1, s25, v1")
    for rb in range(16):
        e(f"s_mov_b32 s26, {rb*32*1088}")
        e(f"buffer_load_dword v{16+rb}, v1, s[20:23], s26 offen")
    e("v_cmp_gt_u32 vcc, 16, v0")
    e("s_and_saveexec_b64 s[40:41], vcc")
    for rb in range(16):
        e(f"s_mov_b32 s26, {rb*32*1088}")
        e(f"buffer_load_dword v{32+rb}, v1, s[20:23], s26 offen offset:1024")
    e("s_mov_b64 exec, s[40:41]")
    e("s_waitcnt vmcnt(0)")
    for st in (1, 2, 4, 8):
        for i in range(0, 16, 2 * st):
            e(f"v_add_f32 v{16+i}, v{16+i}, v{16+i+st}")
    e("v_cvt_pk_bf16_f32 v16, v16, v16")
    e("v_and_b32 v2, 15, v0")
    e("v_lshrrev_b32 v3, 4, v0")
    e("v_lshlrev_b32 v2, 4, v2")
    e("v_bfe_u32 v4, v3, 2, 1")
    e("v_lshl_add_u32 v2, v4, 9, v2")
    e("v_and_b32 v4, 3, v3")
    e("v_lshl_add_u32 v2, v4, 1, v2")
    e("v_lshrrev_b32 v4, 3, v3")
    e("v_lshl_add_u32 v2, v4, 3, v2")
    e("s_lshl_b32 s26, s2, 10")
    e(f"s_add_u32 s26, s26, 0x{WS_KVZ:x}")
    e("v_add_u32 v2, s26, v2")
    e("buffer_store_short v16, v2, s[20:23], 0 offen")
    stamp(1, 1)
    e("v_cmp_gt_u32 vcc, 16, v0")
    e("s_and_saveexec_b64 s[40:41], vcc")
    e("s_cbranch_execz KR_END")
    for st in (1, 2, 4, 8):
        for i in range(0, 16, 2 * st):
            e(f"v_add_f32 v{32+i}, v{32+i}, v{32+i+st}")
    e("v_cvt_pk_bf16_f32 v32, v32, v32")
    e("v_bfe_u32 v4, v0, 2, 1")
    e("v_lshlrev_b32 v2, 9, v4")
    e("v_and_b32 v4, 3, v0")
    e("v_lshl_add_u32 v2, v4, 1, v2")
    e("v_lshrrev_b32 v4, 3, v0")
    e("v_lshl_add_u32 v2, v4, 3, v2")
    e("v_add_u32 v2, s26, v2")
    e(f"buffer_store_short v32, v2, s[20:23], 0 offen offset:{16*16}")
    e(f"buffer_store_short v32, v2, s[20:23], 0 offen offset:{20*16}")
    out.append("KR_END:")
    e("s_endpgm")
    return name


_lab = [0]


def pair_halves(ACC, T, XL):
    _lab[0] += 1
    L = _lab[0]
    e("s_barrier")
    e("s_lshl_b32 s28, s24, 11")
    e(f"s_add_u32 s28, s28, {XL}")
    e("v_lshlrev_b32 v14, 4, v1")
    e("v_add_u32 v14, s28, v14")
    e("s_xor_b32 s28, s28, 0x2000")
    e("v_lshlrev_b32 v15, 4, v1")
    e("v_add_u32 v15, s28, v15")
    e("s_cmp_eq_u32 s35, 0")
    e(f"s_cbranch_scc0 PH1_{L}")
    e(f"ds_write_b128 v14, v[{ACC+8}:{ACC+11}]")
    e(f"ds_write_b128 v14, v[{ACC+12}:{ACC+15}] offset:1024")
    for i in range(8):
        e(f"v_mov_b32 v{T+i}, v{ACC+i}")
    e(f"s_branch PH2_{L}")
    out.append(f"PH1_{L}:")
    e(f"ds_write_b128 v14, v[{ACC}:{ACC+3}]")
    e(f"ds_write_b128 v14, v[{ACC+4}:{ACC+7}] offset:1024")
    for i in range(8):
        e(f"v_mov_b32 v{T+i}, v{ACC+8+i}")
    out.append(f"PH2_{L}:")
    e("s_waitcnt lgkmcnt(0)")
    e("s_barrier")
    e(f"ds_read_b128 v[{ACC}:{ACC+3}], v15")
    e(f"ds_read_b128 v[{ACC+4}:{ACC+7}], v15 offset:1024")
    e("s_waitcnt lgkmcnt(0)")
    for i in range(8):
        e(f"v_add_f32 v{T+i}, v{T+i}, v{ACC+i}")


def k2():
    global SV
    SV = [174, 175]
    name = "k2_attnout_kernel"
    kernel_begin(name)
    cx = Ctx()
    e("s_cmp_ge_u32 s2, 256")
    e("s_cbranch_scc1 K2_END")
    e("s_load_dwordx2 s[4:5], s[0:1], 0")
    e("s_load_dwordx2 s[6:7], s[0:1], 16")
    e("s_load_dwordx2 s[8:9], s[0:1], 72")
    e("s_load_dwordx4 s[40:43], s[0:1], 32")
    e("s_load_dwordx2 s[10:11], s[0:1], 48")
    common_ids()
    wg_map()
    e("s_waitcnt lgkmcnt(0)")
    srd(12, 4, S * D * 2)
    srd(16, 6, D * D * 2)
    srd(20, 8, WS_END)
    srd(44, 40, D * F * 2)
    srd(48, 42, D * F * 2)
    srd(52, 10, D * F * 2)
    stamp_init()
    stamp(2, 0)
    A = 16
    DS = [80, 96, 112]
    ACC = 128
    XR = 144
    T = 152
    KV = 0
    BFB = 16
    e("v_lshrrev_b32 v10, 2, v1")
    e("s_lshl_b32 s28, s24, 6")
    e("v_add_u32 v10, s28, v10")
    e("v_lshlrev_b32 v10, 10, v10")
    e("v_and_b32 v11, 3, v1")
    e("v_lshl_add_u32 v10, v11, 4, v10")
    e("s_lshl_b32 s29, s26, 6")
    e("v_add_u32 v10, s29, v10")
    e("s_lshl_b32 s30, s24, 12")
    e("s_lshl_b32 s27, s25, 2")
    e("s_add_u32 s27, s27, s34")
    e("s_lshl_b32 s28, s27, 15")
    e("v_lshlrev_b32 v8, 4, v1")
    e("v_add_u32 v8, s28, v8")
    e("s_lshl_b32 s28, s35, 10")
    e("v_add_u32 v9, s28, v8")
    e("v_lshlrev_b32 v11, 4, v1")
    e("s_lshl_b32 s28, s24, 12")
    e(f"s_add_u32 s28, s28, 0x{WS_KVZ:x}")
    e("v_add_u32 v11, s28, v11")
    for ii in range(4):
        e(f"s_add_u32 m0, s30, {32768}")
        e("s_nop 0")
        cx.emit(("V", f"buffer_load_dwordx4 v11, s[20:23], 0 offen offset:{ii*1024} lds", "B"))
    for i in range(16):
        if i % 2 == 0 and i:
            e("v_add_u32 v9, 0x1000, v9")
        cx.emit(("V", f"buffer_load_dwordx4 v[{A+4*i}:{A+4*i+3}], v9, s[20:23], 0 offen offset:{WS_PQ + (i%2)*2048}", ("h", i)))
        if i == 1:
            for ii in range(4):
                e(f"s_mov_b32 s31, {ii*16384}")
                e(f"s_add_u32 m0, s30, {ii*1024}")
                e("s_nop 0")
                cx.emit(("V", "buffer_load_dwordx4 v10, s[16:19], s31 offen lds", "B"))
    e("s_lshl_b32 s28, s27, 5")
    e("v_add_u32 v4, s28, v2")
    e("v_lshlrev_b32 v4, 10, v4")
    e("v_lshl_add_u32 v4, v3, 3, v4")
    e("s_lshl_b32 s29, s26, 6")
    e("s_lshl_b32 s28, s35, 5")
    e("s_add_u32 s29, s29, s28")
    e("v_add_u32 v4, s29, v4")
    for q in range(2):
        cx.emit(("V", f"buffer_load_dwordx2 v[{XR+2*q}:{XR+2*q+1}], v4, s[12:15], 0 offen offset:{16*q}", "X"))
    e("s_mul_i32 s28, s2, 5504")
    e("v_lshlrev_b32 v9, 4, v0")
    e("v_add_u32 v9, s28, v9")
    for i in range(2):
        cx.emit(("V", f"buffer_load_dwordx4 v[{162+4*i}:{165+4*i}], v9, s[{44+4*i}:{47+4*i}], 0 offen", "PF"))
    tr_parts()
    e("v_lshl_add_u32 v12, v3, 2, v5")
    e("v_lshlrev_b32 v12, 6, v12")
    e("v_lshl_add_u32 v12, v7, 5, v12")
    e("v_lshl_add_u32 v12, v6, 3, v12")
    e("s_lshl_b32 s28, s35, 10")
    e("v_add_u32 v12, s28, v12")

    e("v_lshlrev_b32 v13, 4, v1")
    e("s_lshl_b32 s28, s35, 10")
    e("s_add_u32 s28, s28, 32768")
    e("v_add_u32 v13, s28, v13")

    def kvread(i):
        return [("L", f"ds_read_b128 a[{KV+4*(i%4)}:{KV+4*(i%4)+3}], v13 offset:{i*2048}", ("k", i))]

    def omfma(i):
        d = DS[i % 3]
        cx.vm.wait({("h", i)})
        cx.lg.wait({("k", i)})
        e(f"v_mfma_f32_32x32x16_bf16 v[{d}:{d+15}], a[{KV+4*(i%4)}:{KV+4*(i%4)+3}], v[{A+4*i}:{A+4*i+3}], 0")

    def oproc(i):
        d = DS[i % 3]
        ops = [f"v_add_f32 v{T}, 0x358637bd, v{d+8}", f"v_rcp_f32 v{T}, v{T}", "s_nop 0"]
        for m in range(8):
            ops.append(f"v_mul_f32 v{d+m}, v{d+m}, v{T}")
        for m in range(4):
            ops.append(f"v_cvt_pk_bf16_f32 v{A+4*i+m}, v{d+2*m}, v{d+2*m+1}")
        return ops

    LA, NBUF = 2, 3

    def reads(i):
        b = BFB + 4 * (i % NBUF)
        return [("L", f"ds_read_b64_tr_b16 a[{b}:{b+1}], v12 offset:{i*2048}", ("b", i)),
                ("L", f"ds_read_b64_tr_b16 a[{b+2}:{b+3}], v12 offset:{i*2048+512}", ("b", i))]

    stamp(2, 1)
    cx.vm.wait({"B"})
    e("s_barrier")
    stamp(2, 2)
    for i in range(4):
        cx.emits(kvread(i))
    for i in range(LA):
        cx.emits(reads(i))
    omfma(0)
    omfma(1)
    e("s_nop 7")
    e("s_nop 3")
    for op in oproc(0):
        e(op)
    for i in range(16):
        b = BFB + 4 * (i % NBUF)
        if i + 2 < 16:
            omfma(i + 2)
        if i + 4 < 16:
            cx.emits(kvread(i + 4))
        if i + LA < 16:
            cx.emits(reads(i + LA))
        if i + 1 < 16:
            ops = oproc(i + 1)
            for op in ops[:8]:
                e(op)
        cx.lg.wait({("b", i)})
        cc = "0" if i == 0 else f"v[{ACC}:{ACC+15}]"
        e(f"v_mfma_f32_32x32x16_bf16 v[{ACC}:{ACC+15}], a[{b}:{b+3}], v[{A+4*i}:{A+4*i+3}], {cc}")
        if i + 1 < 16:
            for op in ops[8:]:
                e(op)
    e("s_nop 7")
    e("s_nop 7")
    stamp(2, 3)
    pair_halves(ACC, T, 0)
    cx.vm.wait({"X"})
    for i in range(4):
        x = XR + i
        e(f"v_lshlrev_b32 v{T+8}, 16, v{x}")
        e(f"v_and_b32 v{T+9}, 0xffff0000, v{x}")
        e(f"v_add_f32 v{T+8}, v{T+8}, v{T+2*i}")
        e(f"v_add_f32 v{T+9}, v{T+9}, v{T+2*i+1}")
        e(f"v_cvt_pk_bf16_f32 v{x}, v{T+8}, v{T+9}")
    e("s_lshl_b32 s29, s26, 11")
    e("s_lshl_b32 s28, s35, 10")
    e("s_add_u32 s29, s29, s28")
    e(f"s_add_u32 s29, s29, 0x{WS_H:x}")
    e("v_add_u32 v8, s29, v8")
    e(f"buffer_store_dwordx4 v[{XR}:{XR+3}], v8, s[20:23], 0 offen")
    stamp(2, 4)
    out.append("K2_END:")
    e("s_endpgm")
    return name


def k3():
    global SV
    SV = [206, 207]
    name = "k3_gateup_kernel"
    kernel_begin(name)
    cx = Ctx()
    e("s_cmp_ge_u32 s2, 240")
    e("s_cbranch_scc1 K3_END")
    e("s_load_dwordx2 s[4:5], s[0:1], 32")
    e("s_load_dwordx2 s[6:7], s[0:1], 40")
    e("s_load_dwordx2 s[8:9], s[0:1], 72")
    e("s_load_dwordx2 s[10:11], s[0:1], 48")
    common_ids()
    wg_map()
    e("s_waitcnt lgkmcnt(0)")
    srd(12, 4, D * F * 2)
    srd(16, 6, D * F * 2)
    srd(20, 8, WS_END)
    srd(44, 10, D * F * 2)
    stamp_init()
    stamp(3, 0)
    A = 16
    ACC = 80
    T = 176
    DV = 200
    R = 6
    SLOT = 24576
    XS = R * SLOT
    e("s_lshl_b32 s27, s25, 2")
    e("s_add_u32 s27, s27, s34")
    e("s_lshl_b32 s28, s27, 15")
    e("s_lshl_b32 s29, s35, 10")
    e("s_add_u32 s28, s28, s29")
    e(f"s_add_u32 s28, s28, 0x{WS_H:x}")
    e("v_lshlrev_b32 v9, 4, v1")
    e("v_add_u32 v9, s28, v9")
    for n in range(16):
        if n % 2 == 0 and n:
            e("v_add_u32 v9, 0x1000, v9")
        cx.emit(("V", f"buffer_load_dwordx4 v[{A+4*n}:{A+4*n+3}], v9, s[20:23], 0 offen offset:{(n%2)*2048}", "A"))
    e("s_movk_i32 s29, 2752")
    e("s_mov_b32 s28, 43691")
    e("s_mul_i32 s32, s26, 192")
    e("s_lshl_b32 s33, s34, 4")
    for i in range(3):
        d = DV + i
        e(f"v_add_u32 v14, {64*i}, v1")
        e("v_mul_lo_u32 v15, v14, s28")
        e("v_lshrrev_b32 v15, 19, v15")
        e("v_mul_u32_u24 v8, 12, v15")
        e("v_sub_u32 v14, v14, v8")
        e("v_add_u32 v15, s33, v15")
        e(f"v_mul_lo_u32 v{d}, v15, s29")
        e(f"v_lshl_add_u32 v{d}, v14, 4, v{d}")
        e(f"v_add_u32 v{d}, s32, v{d}")
    e("s_mul_i32 s30, s34, 3072")
    e("s_mul_i32 s28, s35, 12288")
    e("s_add_u32 s30, s30, s28")
    e("s_cmp_eq_u32 s35, 0")
    e("s_cselect_b32 s36, s12, s16")
    e("s_cselect_b32 s37, s13, s17")
    e("s_mov_b32 s38, s14")
    e("s_mov_b32 s39, 0x00020000")

    def dma_ops(st):
        ops = []
        for i in range(3):
            ops.append(f"s_mov_b32 s31, {st*64*2752}")
            ops.append(f"s_add_u32 m0, s30, {(st % R)*SLOT + i*1024}")
            ops.append("s_nop 0")
            ops.append(("V", f"buffer_load_dwordx4 v{DV+i}, s[36:39], s31 offen lds", ("B", st)))
        return ops

    tr_parts()
    e("v_lshl_add_u32 v12, v3, 2, v5")
    e("v_mul_u32_u24 v12, 192, v12")
    e("v_lshl_add_u32 v12, v7, 5, v12")
    e("v_lshl_add_u32 v12, v6, 3, v12")
    e("s_mul_i32 s28, s35, 3072")
    e("v_add_u32 v12, s28, v12")
    e("v_add_u32 v13, 0xc000, v12")
    e("v_add_u32 v11, 0x18000, v12")
    for st in range(2):
        cx.emits(dma_ops(st))
    stamp(3, 1)
    cx.vm.wait({"A"})
    stamp(3, 2)
    RS, NB = 14, 15
    s0, s1, q0, q1, ones = T, T + 1, T + 2, T + 3, T + 4
    e(f"v_mov_b32 v{ones}, 0x3f803f80")
    for r in (s0, s1, q0, q1):
        e(f"v_mov_b32 v{r}, 0")
    main = []
    for i in range(64):
        main.append(f"v_dot2c_f32_bf16 v{s0 if i % 2 == 0 else s1}, v{A+i}, v{ones}")
        main.append(f"v_dot2c_f32_bf16 v{q0 if i % 2 == 0 else q1}, v{A+i}, v{A+i}")
    cx.spread(main, [])
    e("s_nop 3")
    e(f"v_add_f32 v{s0}, v{s0}, v{s1}")
    e(f"v_add_f32 v{q0}, v{q0}, v{q1}")
    e(f"v_mov_b32 v{s1}, v{s0}")
    e(f"v_mov_b32 v{q1}, v{q0}")
    e("s_nop 1")
    e(f"v_permlane32_swap_b32 v{s0}, v{s1}")
    e(f"v_permlane32_swap_b32 v{q0}, v{q1}")
    e("s_nop 1")
    e(f"v_add_f32 v{s0}, v{s0}, v{s1}")
    e(f"v_add_f32 v{s1}, v{q0}, v{q1}")
    e("s_lshl_b32 s28, s24, 8")
    e(f"s_add_u32 s28, s28, {XS}")
    e("v_lshlrev_b32 v8, 3, v2")
    e("v_add_u32 v9, s28, v8")
    e("s_xor_b32 s28, s28, 0x400")
    e("v_add_u32 v8, s28, v8")
    e(f"ds_write_b64 v9, v[{s0}:{s1}]")
    e("s_waitcnt lgkmcnt(0)")
    e("s_barrier")
    e(f"ds_read_b64 v[{q0}:{q1}], v8")
    e("s_waitcnt lgkmcnt(0)")
    e(f"v_add_f32 v{s0}, v{s0}, v{q0}")
    e(f"v_add_f32 v{q0}, v{s1}, v{q1}")
    finish_stats(s0, q0, RS, NB, 1)
    for r in range(4):
        cx.emits(ln_apply_ops(A + r, RS, NB, T))

    def reads(n):
        st, t2 = n // 2, n % 2
        sl = st % R
        va = [12, 13, 11][sl // 2]
        base = (sl % 2) * SLOT + t2 * 32 * 192
        b = 24 * (n % 2)
        ops = []
        for p in range(2):
            for u in range(3):
                o = base + p * 12288 + u * 64
                k = (p * 3 + u) * 4
                ops.append(("L", f"ds_read_b64_tr_b16 a[{b+k}:{b+k+1}], v{va} offset:{o}", ("b", n)))
                ops.append(("L", f"ds_read_b64_tr_b16 a[{b+k+2}:{b+k+3}], v{va} offset:{o+8*192}", ("b", n)))
        return ops

    def pre(n):
        if n % 2 == 0:
            cx.vm.wait({("B", n // 2)})
            e("s_barrier")

    stamp(3, 3)
    pre(0)
    cx.emits(reads(0))
    for n in range(16):
        cx.lg.wait({("b", n)})
        fill = []
        if n + 1 < 16:
            pre(n + 1)
            fill += reads(n + 1)
        b = 24 * (n % 2)
        a = f"v[{A+4*n}:{A+4*n+3}]"
        main = []
        for x in range(6):
            cc = "0" if n == 0 else f"v[{ACC+16*x}:{ACC+16*x+15}]"
            main.append(f"v_mfma_f32_32x32x16_bf16 v[{ACC+16*x}:{ACC+16*x+15}], a[{b+4*x}:{b+4*x+3}], {a}, {cc}")
        f2 = []
        if n + 1 < 16:
            f2 += ln_apply4(A + 4 * (n + 1), RS, NB, T)
        st = n // 2
        if n == 0:
            f2 += dma_ops(2)
        if n % 2 == 1 and st + 3 < 8:
            f2 += dma_ops(st + 3)
        cx.spread(main, merge(fill, f2))
    e("s_mul_i32 s28, s2, 5888")
    e("v_lshlrev_b32 v9, 4, v0")
    e("v_add_u32 v9, s28, v9")
    e("buffer_load_dwordx4 v[200:203], v9, s[44:47], 0 offen")
    e("s_nop 7")
    e("s_nop 7")
    stamp(3, 4)
    e("s_barrier")
    e("s_lshl_b32 s28, s24, 14")
    e("v_lshlrev_b32 v8, 4, v1")
    e("v_add_u32 v9, s28, v8")
    e("s_xor_b32 s28, s28, 0x10000")
    e("v_add_u32 v8, s28, v8")
    e("s_mul_i32 s28, s27, 88064")
    e("s_mul_i32 s29, s26, 6144")
    e("s_add_u32 s28, s28, s29")
    e(f"s_add_u32 s28, s28, 0x{WS_HH:x}")
    e("v_lshlrev_b32 v10, 4, v1")
    e("v_add_u32 v10, s28, v10")
    G = [ACC, ACC + 16, ACC + 32]
    U = [ACC + 48, ACC + 64, ACC + 80]

    def fin(u):
        for i in range(16):
            e(f"v_mul_f32 v{G[u]+i}, v{G[u]+i}, v{U[u]+i}")
        for q in range(8):
            e(f"v_cvt_pk_bf16_f32 v{U[u]+q}, v{G[u]+2*q}, v{G[u]+2*q+1}")
        e(f"s_movk_i32 s31, {2048*u}")
        for tt in range(2):
            e(f"buffer_store_dwordx4 v[{U[u]+4*tt}:{U[u]+4*tt+3}], v10, s[20:23], s31 offen offset:{1024*tt} sc1")

    e("s_cmp_eq_u32 s35, 0")
    e("s_cbranch_scc0 K3_KP1")
    for i, base in enumerate((G[2], U[2])):
        for q in range(4):
            e(f"ds_write_b128 v9, v[{base+4*q}:{base+4*q+3}] offset:{(4*i+q)*1024}")
    e("s_waitcnt lgkmcnt(0)")
    e("s_barrier")
    for i in range(16):
        e(f"ds_read_b128 v[{A+4*i}:{A+4*i+3}], v8 offset:{i*1024}")
    for i, base in enumerate((G[0], U[0], G[1], U[1])):
        e(f"s_waitcnt lgkmcnt({12-4*i})")
        for q in range(16):
            e(f"v_add_f32 v{base+q}, v{base+q}, v{A+16*i+q}")
    fin(0)
    e("s_cmp_ge_u32 s26, 14")
    e("s_cbranch_scc1 K3_END")
    fin(1)
    stamp(3, 5)
    e("s_branch K3_END")
    out.append("K3_KP1:")
    for i, base in enumerate((G[0], U[0], G[1], U[1])):
        for q in range(4):
            e(f"ds_write_b128 v9, v[{base+4*q}:{base+4*q+3}] offset:{(4*i+q)*1024}")
    e("s_waitcnt lgkmcnt(0)")
    e("s_barrier")
    e("s_cmp_ge_u32 s26, 14")
    e("s_cbranch_scc1 K3_END")
    for i in range(8):
        e(f"ds_read_b128 v[{A+4*i}:{A+4*i+3}], v8 offset:{i*1024}")
    for i, base in enumerate((G[2], U[2])):
        e(f"s_waitcnt lgkmcnt({4-4*i})")
        for q in range(16):
            e(f"v_add_f32 v{base+q}, v{base+q}, v{A+16*i+q}")
    fin(2)
    stamp(3, 5)
    out.append("K3_END:")
    e("s_endpgm")
    return name


def k4():
    global SV
    SV = [62, 63]
    name = NAME + "_kernel"
    kernel_begin(name)
    cx = Ctx()
    e("s_cmp_ge_u32 s2, 256")
    e("s_cbranch_scc1 K4_END")
    e("s_load_dwordx2 s[4:5], s[0:1], 48")
    e("s_load_dwordx2 s[6:7], s[0:1], 56")
    e("s_load_dwordx2 s[8:9], s[0:1], 72")
    common_ids()
    e("s_and_b32 s25, s2, 7")
    e("s_lshl_b32 s25, s25, 2")
    e("s_bfe_u32 s26, s2, 0x20003")
    e("s_or_b32 s25, s25, s26")
    e("s_lshr_b32 s26, s2, 5")
    e("s_and_b32 s32, s24, 1")
    e("s_bfe_u32 s33, s24, 0x10001")
    e("s_waitcnt lgkmcnt(0)")
    srd(12, 4, F * D * 2)
    srd(16, 6, S * D * 2)
    srd(20, 8, WS_END)
    stamp_init()
    stamp(4, 0)
    NK = F // 16
    SL = 8
    NST = (NK + SL - 1) // SL
    R = 4
    SLOT = 32768
    ACC = 16
    XR = 32
    T = 40
    LA = 2
    NBUF = 3
    AFR = 0
    BFR = 4 * NBUF
    e("s_lshl_b32 s27, s25, 1")
    e("s_add_u32 s27, s27, s32")
    e("s_lshl_b32 s28, s27, 15")
    e("s_lshl_b32 s29, s26, 12")
    e("s_add_u32 s28, s28, s29")
    e("s_lshl_b32 s29, s33, 11")
    e("s_add_u32 s28, s28, s29")
    e("s_lshl_b32 s29, s35, 10")
    e("s_add_u32 s28, s28, s29")
    e(f"s_add_u32 s28, s28, 0x{WS_H:x}")
    e("v_lshlrev_b32 v14, 4, v1")
    e("v_add_u32 v14, s28, v14")
    cx.emit(("V", f"buffer_load_dwordx4 v[{XR}:{XR+3}], v14, s[20:23], 0 offen", "R"))
    e("s_mul_i32 s28, s27, 88064")
    e("s_lshr_b32 s29, s24, 1")
    e("s_lshl_b32 s29, s29, 11")
    e("s_add_u32 s28, s28, s29")
    e(f"s_add_u32 s28, s28, 0x{WS_HH:x}")
    e("v_lshlrev_b32 v15, 4, v1")
    e("v_add_u32 v15, s28, v15")
    e("s_lshl_b32 s36, s32, 13")
    e("s_add_u32 s36, s36, s29")
    e("v_lshrrev_b32 v10, 3, v1")
    e("v_and_b32 v11, 7, v1")
    e("v_bfe_u32 v8, v10, 1, 1")
    e("v_lshlrev_b32 v8, 2, v8")
    e("v_xor_b32 v11, v11, v8")
    e("s_lshl_b32 s28, s24, 4")
    e("v_add_u32 v10, s28, v10")
    e("v_lshlrev_b32 v10, 10, v10")
    e("v_lshl_add_u32 v10, v11, 4, v10")
    e("s_lshl_b32 s29, s26, 7")
    e("v_add_u32 v10, s29, v10")
    e("s_lshl_b32 s30, s24, 11")
    e("s_add_u32 s30, s30, 16384")

    def dma_ops(st):
        ops = []
        sl = (st % R) * SLOT
        for i in range(2):
            ops.append(f"s_mov_b32 s31, {st*SL*1024 + i*1024}")
            ops.append(f"s_add_u32 m0, s36, {sl + i*1024}")
            ops.append("s_nop 0")
            ops.append(("V", "buffer_load_dwordx4 v15, s[20:23], s31 offen lds", ("B", st)))
            ops.append(f"s_mov_b32 s31, {(st*128 + 8*i)*1024}")
            ops.append(f"s_add_u32 m0, s30, {sl + i*1024}")
            ops.append("s_nop 0")
            ops.append(("V", "buffer_load_dwordx4 v10, s[12:15], s31 offen lds", ("B", st)))
        return ops

    for st in range(3):
        cx.emits(dma_ops(st))
    tr_parts()
    e("v_lshl_add_u32 v12, v3, 2, v5")
    e("v_lshlrev_b32 v12, 7, v12")
    e("v_lshrrev_b32 v8, 1, v5")
    e("v_xor_b32 v8, s33, v8")
    e("v_lshl_add_u32 v12, v8, 6, v12")
    e("v_lshl_add_u32 v12, v7, 5, v12")
    e("v_lshl_add_u32 v12, v6, 3, v12")
    e("s_lshl_b32 s28, s35, 11")
    e("s_add_u32 s28, s28, 0x4000")
    e("v_add_u32 v12, s28, v12")
    e("v_add_u32 v13, 0x10000, v12")
    e("s_lshl_b32 s28, s32, 13")
    e("s_lshl_b32 s29, s35, 10")
    e("s_add_u32 s28, s28, s29")
    e("v_lshlrev_b32 v4, 4, v1")
    e("v_add_u32 v4, s28, v4")
    e("v_add_u32 v9, 0x10000, v4")
    stamp(4, 1)
    NL = NK // 2

    def reads(n):
        st, t2 = n // 4, n % 4
        sl = st % R
        hi = sl >= 2
        base = (sl % 2) * SLOT
        af = AFR + 4 * (n % NBUF)
        bf = BFR + 4 * (n % NBUF)
        return [("L", f"ds_read_b128 a[{af}:{af+3}], v{9 if hi else 4} offset:{base + t2*2048}", ("b", n)),
                ("L", f"ds_read_b64_tr_b16 a[{bf}:{bf+1}], v{13 if hi else 12} offset:{base + t2*4096}", ("b", n)),
                ("L", f"ds_read_b64_tr_b16 a[{bf+2}:{bf+3}], v{13 if hi else 12} offset:{base + t2*4096 + 1024}", ("b", n))]

    def pre(n):
        if n % 4 == 0:
            cx.vm.wait({("B", n // 4)})
            e("s_barrier")

    for n in range(LA):
        pre(n)
        cx.emits(reads(n))
    for n in range(NL):
        cx.lg.wait({("b", n)})
        af = AFR + 4 * (n % NBUF)
        bf = BFR + 4 * (n % NBUF)
        cc = "0" if n == 0 else f"v[{ACC}:{ACC+15}]"
        if n + LA < NL:
            pre(n + LA)
        e(f"v_mfma_f32_32x32x16_bf16 v[{ACC}:{ACC+15}], a[{bf}:{bf+3}], a[{af}:{af+3}], {cc}")
        if n + LA < NL:
            cx.emits(reads(n + LA))
        st, t2 = n // 4, n % 4
        if t2 >= 2 and st + 3 < NST:
            ops = dma_ops(st + 3)
            cx.emits(ops[(t2 - 2) * 8:(t2 - 2) * 8 + 8])
    e("s_nop 7")
    e("s_nop 7")
    stamp(4, 3)
    pair_halves(ACC, T, 0)
    cx.vm.wait({"R"})
    for i in range(4):
        x = XR + i
        e(f"v_lshlrev_b32 v{T+8}, 16, v{x}")
        e(f"v_and_b32 v{T+9}, 0xffff0000, v{x}")
        e(f"v_add_f32 v{T+8}, v{T+8}, v{T+2*i}")
        e(f"v_add_f32 v{T+9}, v{T+9}, v{T+2*i+1}")
        e(f"v_cvt_pk_bf16_f32 v{x}, v{T+8}, v{T+9}")
    e("s_lshl_b32 s28, s27, 5")
    e("v_add_u32 v8, s28, v2")
    e("v_lshlrev_b32 v9, 10, v8")
    e("v_lshl_add_u32 v9, v3, 3, v9")
    e("s_lshl_b32 s29, s26, 7")
    e("s_lshl_b32 s28, s33, 6")
    e("s_add_u32 s29, s29, s28")
    e("s_lshl_b32 s28, s35, 5")
    e("s_add_u32 s29, s29, s28")
    e("v_add_u32 v9, s29, v9")
    for q in range(2):
        e(f"buffer_store_dwordx2 v[{XR+2*q}:{XR+2*q+1}], v9, s[16:19], 0 offen offset:{16*q}")
    stamp(4, 4)
    out.append("K4_END:")
    e("s_endpgm")
    return name


def main():
    hdr = open("cdna_kernels/%s.s.ref" % NAME).read().splitlines()
    for l in hdr:
        if "@launch" in l and "grid=(4096" in l:
            break
        out.append(l.replace("@launch", "launch"))
    out.append("; @launch kernel=k1_qkv_kernel grid=(256,1,1) block=(512,1,1) lds=133120")
    out.append("; @launch kernel=kr_reduce_kernel grid=(32,1,1) block=(256,1,1) lds=0")
    out.append("; @launch kernel=k2_attnout_kernel grid=(256,1,1) block=(512,1,1) lds=65536")
    out.append("; @launch kernel=k3_gateup_kernel grid=(240,1,1) block=(512,1,1) lds=149504")
    out.append(f"; @launch kernel={NAME}_kernel grid=(256,1,1) block=(512,1,1) lds=131072")
    out.append('.amdgcn_target "amdgcn-amd-amdhsa--gfx950"')
    out.append(".text")
    n1 = k1()
    nr = kr()
    n2 = k2()
    n3 = k3()
    n4 = k4()
    out.append('.section .rodata,"a"')
    kdesc(n1, 216, 176)
    kdesc(nr, 64, 64)
    kdesc(n2, 208, 176)
    kdesc(n3, 256, 208)
    kdesc(n4, 96, 64)
    path = sys.argv[1] if len(sys.argv) > 1 else "cdna_kernels/%s.s" % NAME
    open(path, "w").write("\n".join(out) + "\n")


main()
```

```python
import sys, os

NAME = "sequential_preLN__linear_attn_block__glu_gated_bilinear__prompt"
S, D, F = 2048, 512, 1376
WS_PQ = 0x000000
WS_PART = 0x200000
WS_KVZ = 0x300000
WS_H = 0x400000
WS_HH = 0x600000
WS_END = 0x600000 + S * F * 2
STAMP = len(sys.argv) > 2 and sys.argv[2] == "stamp"
WS_STAMP = 0xF000000

out = []


def e(s=""):
    out.append("    " + s if s and not s.endswith(":") else s)


def srd(base, ptr, size):
    e(f"s_mov_b32 s{base}, s{ptr}")
    e(f"s_mov_b32 s{base+1}, s{ptr+1}")
    e(f"s_mov_b32 s{base+2}, 0x{size:x}")
    e(f"s_mov_b32 s{base+3}, 0x00020000")


def kernel_begin(name):
    out.append(".p2align 8")
    out.append(f".globl {name}")
    out.append(f".type {name},@function")
    out.append(f"{name}:")


def kdesc(name, vgpr, accum, sgpr=96):
    out.append(".p2align 6")
    out.append(f".amdhsa_kernel {name}")
    out.append(f"  .amdhsa_next_free_vgpr {vgpr}")
    out.append(f"  .amdhsa_next_free_sgpr {sgpr}")
    out.append(f"  .amdhsa_accum_offset {accum}")
    out.append("  .amdhsa_group_segment_fixed_size 0")
    out.append("  .amdhsa_kernarg_size 80")
    out.append("  .amdhsa_user_sgpr_count 2")
    out.append("  .amdhsa_user_sgpr_kernarg_segment_ptr 1")
    out.append("  .amdhsa_system_sgpr_workgroup_id_x 1")
    out.append(".end_amdhsa_kernel")


SV = [14, 15]


def stamp(kidx, n):
    if not STAMP:
        return
    a, b = SV
    e("s_memtime s[60:61]")
    e("s_memrealtime s[68:69]")
    e("s_waitcnt lgkmcnt(0)")
    e(f"v_mov_b32 v{a}, s60")
    e("s_lshl_b32 s62, s2, 3")
    e("s_add_u32 s62, s62, s24")
    e("s_lshl_b32 s62, s62, 5")
    e(f"s_add_u32 s62, s62, {WS_STAMP + kidx*0x10000}")
    e(f"v_mov_b32 v{b}, s62")
    e(f"buffer_store_dword v{a}, v{b}, s[64:67], 0 offen offset:{n*4}")
    e(f"v_mov_b32 v{a}, s68")
    e(f"buffer_store_dword v{a}, v{b}, s[64:67], 0 offen offset:{24 if n == 0 else 28}")


def stamp_init():
    if STAMP:
        srd(64, 8, 0x10000000)


def common_ids():
    e("v_and_b32 v1, 63, v0")
    e("v_lshrrev_b32 v4, 6, v0")
    e("s_nop 0")
    e("v_readfirstlane_b32 s24, v4")
    e("v_and_b32 v2, 31, v1")
    e("v_lshrrev_b32 v3, 5, v1")
    e("s_and_b32 s34, s24, 3")
    e("s_lshr_b32 s35, s24, 2")


def wg_map():
    e("s_and_b32 s25, s2, 7")
    e("s_lshl_b32 s25, s25, 1")
    e("s_bfe_u32 s26, s2, 0x10003")
    e("s_or_b32 s25, s25, s26")
    e("s_lshr_b32 s26, s2, 4")


def tr_parts():
    e("v_bfe_u32 v5, v1, 2, 2")
    e("v_and_b32 v6, 3, v1")
    e("v_bfe_u32 v7, v1, 4, 1")


def ln_apply_ops(reg, rs, nb, t0):
    lo, hi = t0, t0 + 1
    return [
        f"v_lshlrev_b32 v{lo}, 16, v{reg}",
        f"v_and_b32 v{hi}, 0xffff0000, v{reg}",
        f"v_fma_f32 v{lo}, v{lo}, v{rs}, v{nb}",
        f"v_fma_f32 v{hi}, v{hi}, v{rs}, v{nb}",
        f"v_cvt_pk_bf16_f32 v{reg}, v{lo}, v{hi}",
    ]


def ln_apply4(base, rs, nb, t0):
    ops = []
    for r in range(4):
        ops.append(f"v_lshlrev_b32 v{t0+2*r}, 16, v{base+r}")
    for r in range(4):
        ops.append(f"v_and_b32 v{t0+2*r+1}, 0xffff0000, v{base+r}")
    for r in range(4):
        ops.append(f"v_fma_f32 v{t0+2*r}, v{t0+2*r}, v{rs}, v{nb}")
    for r in range(4):
        ops.append(f"v_fma_f32 v{t0+2*r+1}, v{t0+2*r+1}, v{rs}, v{nb}")
    for r in range(4):
        ops.append(f"v_cvt_pk_bf16_f32 v{base+r}, v{t0+2*r}, v{t0+2*r+1}")
    return ops


def phi_ops(regs, tmp):
    for i, r in enumerate(regs):
        e(f"v_mul_f32 v{tmp+i}, 0x3fb8aa3b, v{r}")
    for i, r in enumerate(regs):
        e(f"v_min_f32 v{tmp+i}, 0, v{tmp+i}")
    for i, r in enumerate(regs):
        e(f"v_exp_f32 v{tmp+i}, v{tmp+i}")
    for i, r in enumerate(regs):
        e(f"v_max_f32 v{r}, 0, v{r}")
    for i, r in enumerate(regs):
        e(f"v_add_f32 v{tmp+i}, 0x358637bd, v{tmp+i}")
    for i, r in enumerate(regs):
        e(f"v_add_f32 v{r}, v{r}, v{tmp+i}")


class Cnt:
    def __init__(self, name, cap):
        self.q, self.name, self.cap = [], name, cap

    def issue(self, tag):
        self.q.append(tag)

    def wait(self, tags):
        idx = -1
        for i, t in enumerate(self.q):
            if t in tags:
                idx = i
        if idx < 0:
            return
        n = min(len(self.q) - 1 - idx, self.cap)
        e(f"s_waitcnt {self.name}({n})")
        self.q = self.q[len(self.q) - n:] if n else []


class Ctx:
    def __init__(self):
        self.vm = Cnt("vmcnt", 63)
        self.lg = Cnt("lgkmcnt", 15)

    def emit(self, op):
        if isinstance(op, tuple):
            e(op[1])
            (self.vm if op[0] == "V" else self.lg).issue(op[2])
        else:
            e(op)

    def emits(self, ops):
        for op in ops:
            self.emit(op)

    def spread(self, main, fill):
        n = len(main)
        k = 0
        for i, mm in enumerate(main):
            e(mm)
            tgt = (len(fill) * (i + 1)) // n
            while k < tgt:
                self.emit(fill[k])
                k += 1


def merge(a, b):
    o = []
    i = j = 0
    while i < len(a) or j < len(b):
        if j >= len(b) or (i < len(a) and i * len(b) <= j * len(a)):
            o.append(a[i]); i += 1
        else:
            o.append(b[j]); j += 1
    return o


def finish_stats(sm, qm, rs, nb, n):
    for m in range(n):
        e(f"v_mul_f32 v{sm+m}, 0x3b000000, v{sm+m}")
        e(f"v_mul_f32 v{qm+m}, 0x3b000000, v{qm+m}")
    for m in range(n):
        e(f"v_fma_f32 v{qm+m}, -v{sm+m}, v{sm+m}, v{qm+m}")
    for m in range(n):
        e(f"v_max_f32 v{qm+m}, 0, v{qm+m}")
    for m in range(n):
        e(f"v_add_f32 v{qm+m}, 0x3727c5ac, v{qm+m}")
    for m in range(n):
        e(f"v_rsq_f32 v{rs+m}, v{qm+m}")
    e("s_nop 0")
    for m in range(n):
        e(f"v_mul_f32 v{nb+m}, v{sm+m}, v{rs+m}")
    for m in range(n):
        e(f"v_sub_f32 v{nb+m}, 0, v{nb+m}")


def k1():
    global SV
    name = "k1_qkv_kernel"
    kernel_begin(name)
    cx = Ctx()
    SV = [174, 175]
    e("s_cmp_ge_u32 s2, 256")
    e("s_cbranch_scc1 K1_END")
    e("s_load_dwordx2 s[4:5], s[0:1], 0")
    e("s_load_dwordx2 s[6:7], s[0:1], 8")
    e("s_load_dwordx2 s[8:9], s[0:1], 72")
    e("s_load_dwordx2 s[10:11], s[0:1], 16")
    e("s_load_dwordx4 s[40:43], s[0:1], 32")
    common_ids()
    wg_map()
    e("s_waitcnt lgkmcnt(0)")
    srd(12, 4, S * D * 2)
    srd(16, 6, D * 3 * D * 2)
    srd(20, 8, WS_END)
    srd(44, 10, D * D * 2)
    srd(48, 40, D * F * 2)
    srd(52, 42, D * F * 2)
    stamp_init()
    stamp(0, 0)
    A = 16
    ACQ, ACK, ACV = 80, 96, 112
    WA, RA, RSN = 128, 132, 136
    T = 144
    AF = 0
    BFB = 16
    XS = 131072
    e("s_lshl_b32 s27, s25, 7")
    e("s_lshl_b32 s28, s34, 5")
    e("s_add_u32 s27, s27, s28")
    e("v_lshrrev_b32 v8, 3, v1")
    e("v_and_b32 v11, 7, v1")
    e("v_add_u32 v9, s27, v8")
    e("v_lshlrev_b32 v9, 10, v9")
    e("v_lshl_add_u32 v9, v11, 4, v9")
    e("s_lshl_b32 s28, s35, 7")
    e("v_add_u32 v9, s28, v9")
    for cc in range(4):
        for m in range(4):
            e(f"s_mov_b32 s31, {m*8192}")
            r = A + (m * 4 + cc) * 4
            cx.emit(("V", f"buffer_load_dwordx4 v[{r}:{r+3}], v9, s[12:15], s31 offen offset:{256*cc}", "A"))
    e("v_lshrrev_b32 v10, 2, v1")
    e("s_lshl_b32 s28, s24, 4")
    e("v_add_u32 v10, s28, v10")
    e("s_movk_i32 s29, 3072")
    e("v_mul_lo_u32 v10, v10, s29")
    e("v_and_b32 v14, 3, v1")
    e("v_lshl_add_u32 v10, v14, 4, v10")
    e("s_lshl_b32 s29, s26, 6")
    e("v_add_u32 v10, s29, v10")
    e("s_lshl_b32 s30, s24, 10")

    def dma(qq):
        ops = []
        for p in range(3):
            ops.append(f"s_mov_b32 s31, {p*1024 + 128*qq*3072}")
            ops.append(f"s_add_u32 m0, s30, {p*32768 + 128*qq*64}")
            ops.append("s_nop 0")
            ops.append(("V", "buffer_load_dwordx4 v10, s[16:19], s31 offen lds", ("B", qq)))
        return ops
    for qq in range(2):
        cx.emits(dma(qq))
    tr_parts()
    e("v_lshl_add_u32 v12, v3, 3, v5")
    e("v_lshlrev_b32 v12, 6, v12")
    e("v_lshl_add_u32 v12, v7, 5, v12")
    e("v_lshl_add_u32 v12, v6, 3, v12")
    e("v_add_u32 v13, 0x10000, v12")
    e("s_lshl_b32 s28, s24, 12")
    e("s_add_u32 s28, s28, 98304")
    for m in range(4):
        e(f"v_add_u32 v14, {8*m}, v8")
        e("v_bfe_u32 v15, v14, 1, 3")
        e("v_xor_b32 v15, v15, v11")
        e("v_lshlrev_b32 v15, 4, v15")
        e(f"v_lshl_add_u32 v{WA+m}, v14, 7, v15")
        e(f"v_add_u32 v{WA+m}, s28, v{WA+m}")
    for t in range(4):
        e(f"v_add_u32 v14, {2*t}, v3")
        e("v_bfe_u32 v15, v2, 1, 3")
        e("v_xor_b32 v15, v15, v14")
        e("v_lshlrev_b32 v15, 4, v15")
        e(f"v_lshl_add_u32 v{RA+t}, v2, 7, v15")
        e(f"v_add_u32 v{RA+t}, s28, v{RA+t}")
    stamp(0, 1)
    cx.vm.wait({"A"})
    stamp(0, 2)
    SM, QM, ONE = T, T + 4, T + 8
    e(f"v_mov_b32 v{ONE}, 0x3f803f80")
    for m in range(4):
        e(f"v_mov_b32 v{SM+m}, 0")
        e(f"v_mov_b32 v{QM+m}, 0")
    for cc in range(4):
        for r in range(4):
            for m in range(4):
                reg = A + (m * 4 + cc) * 4 + r
                e(f"v_dot2c_f32_bf16 v{SM+m}, v{reg}, v{ONE}")
                e(f"v_dot2c_f32_bf16 v{QM+m}, v{reg}, v{reg}")
    e("s_nop 3")
    for dpp in ("quad_perm:[1,0,3,2]", "quad_perm:[2,3,0,1]", "row_half_mirror"):
        for i in range(8):
            e(f"v_add_f32_dpp v{T+i}, v{T+i}, v{T+i} {dpp} row_mask:0xf bank_mask:0xf")
        e("s_nop 1")
    e("s_lshl_b32 s28, s24, 8")
    e(f"s_add_u32 s28, s28, {XS}")
    e("v_lshlrev_b32 v14, 3, v8")
    e("v_add_u32 v14, s28, v14")
    e("s_xor_b32 s28, s28, 0x400")
    e("v_lshlrev_b32 v15, 3, v8")
    e("v_add_u32 v15, s28, v15")
    for m in range(4):
        e(f"v_mov_b32 v{T+10+2*m}, v{SM+m}")
        e(f"v_mov_b32 v{T+11+2*m}, v{QM+m}")
    for m in range(4):
        e(f"ds_write_b64 v14, v[{T+10+2*m}:{T+11+2*m}] offset:{64*m}")
    e("s_waitcnt lgkmcnt(0)")
    e("s_barrier")
    for m in range(4):
        e(f"ds_read_b64 v[{T+10+2*m}:{T+11+2*m}], v15 offset:{64*m}")
    e("s_waitcnt lgkmcnt(0)")
    for m in range(4):
        e(f"v_add_f32 v{SM+m}, v{SM+m}, v{T+10+2*m}")
        e(f"v_add_f32 v{QM+m}, v{QM+m}, v{T+11+2*m}")
    finish_stats(SM, QM, RSN, RSN + 4, 4)

    def nw_ops(cc, m):
        ops = []
        base = A + (m * 4 + cc) * 4
        ops += ln_apply4(base, RSN + m, RSN + 4 + m, T + 20)
        ops.append(("L", f"ds_write_b128 v{WA+m}, v[{base}:{base+3}]", ("w", cc)))
        return ops

    def rd_ops(cc):
        return [("L", f"ds_read_b128 a[{AF+4*t}:{AF+4*t+3}], v{RA+t}", ("a", cc)) for t in range(4)]

    e("s_lshl_b32 s28, s35, 12")
    e("v_add_u32 v12, s28, v12")
    e("v_add_u32 v13, s28, v13")

    def reads(n):
        cc, t = n // 4, n % 4
        j0 = 8 * cc + t
        b = BFB + 12 * (n % 2)
        ops = []
        for (va, off, k) in ((12, j0*1024, 0), (12, j0*1024+256, 2), (12, 32768+j0*1024, 4),
                             (12, 32768+j0*1024+256, 6), (13, j0*1024, 8), (13, j0*1024+256, 10)):
            ops.append(("L", f"ds_read_b64_tr_b16 a[{b+k}:{b+k+1}], v{va} offset:{off}", ("b", n)))
        return ops

    def pre(n):
        if n % 4 == 0:
            cx.vm.wait({("B", n // 4)})
            e("s_barrier")

    for m in range(4):
        cx.emits(nw_ops(0, m))
    cx.emits(rd_ops(0))
    stamp(0, 3)
    pre(0)
    cx.emits(reads(0))
    for n in range(16):
        cc, t = n // 4, n % 4
        b = BFB + 12 * (n % 2)
        cx.lg.wait({("b", n), ("a", cc)})
        fill = []
        if n + 1 < 16:
            pre(n + 1)
            fill += reads(n + 1)
        a = f"a[{AF+4*t}:{AF+4*t+3}]"
        cq = "0" if n == 0 else f"v[{ACQ}:{ACQ+15}]"
        ck = "0" if n == 0 else f"v[{ACK}:{ACK+15}]"
        cv = "0" if n == 0 else f"v[{ACV}:{ACV+15}]"
        main = [
            f"v_mfma_f32_32x32x16_bf16 v[{ACQ}:{ACQ+15}], a[{b}:{b+3}], {a}, {cq}",
            f"v_mfma_f32_32x32x16_bf16 v[{ACK}:{ACK+15}], {a}, a[{b+4}:{b+7}], {ck}",
            f"v_mfma_f32_32x32x16_bf16 v[{ACV}:{ACV+15}], {a}, a[{b+8}:{b+11}], {cv}",
        ]
        f2 = []
        if cc + 1 < 4:
            f2 += nw_ops(cc + 1, t)
        if n in (0, 4):
            f2 += dma(2 + n // 4)
        cx.spread(main, merge(fill, f2))
        if t == 3 and cc + 1 < 4:
            cx.emits(rd_ops(cc + 1))
    e("s_lshl_b32 s28, s2, 11")
    e("v_lshlrev_b32 v14, 2, v0")
    e("v_add_u32 v14, s28, v14")
    e("buffer_load_dword v13, v14, s[44:47], 0 offen")
    e("s_mul_i32 s28, s2, 5504")
    e("v_lshlrev_b32 v14, 4, v0")
    e("v_add_u32 v14, s28, v14")
    e("buffer_load_dwordx4 a[16:19], v14, s[48:51], 0 offen")
    e("buffer_load_dwordx4 a[20:23], v14, s[52:55], 0 offen")
    e("s_nop 7")
    e("s_nop 7")
    stamp(0, 4)
    e("s_barrier")
    e("s_lshl_b32 s28, s24, 13")
    e("v_lshlrev_b32 v14, 4, v1")
    e("v_add_u32 v14, s28, v14")
    e("s_xor_b32 s28, s28, 0x8000")
    e("v_lshlrev_b32 v15, 4, v1")
    e("v_add_u32 v15, s28, v15")
    e("s_cmp_eq_u32 s35, 0")
    e("s_cbranch_scc0 K1_KP1")
    for i in range(4):
        e(f"ds_write_b128 v14, v[{ACQ+4*i}:{ACQ+4*i+3}] offset:{1024*i}")
    e("s_waitcnt lgkmcnt(0)")
    e("s_barrier")
    for i in range(8):
        e(f"ds_read_b128 v[{A+4*i}:{A+4*i+3}], v15 offset:{1024*i}")
    e("s_waitcnt lgkmcnt(0)")
    for i in range(32):
        e(f"v_add_f32 v{ACK+i}, v{ACK+i}, v{A+i}")
    phi_ops([ACK + i for i in range(16)], T)
    PK, VV, ON = A, A + 8, A + 16
    for m in range(8):
        e(f"v_cvt_pk_bf16_f32 v{PK+m}, v{ACK+2*m}, v{ACK+2*m+1}")
        e(f"v_cvt_pk_bf16_f32 v{VV+m}, v{ACV+2*m}, v{ACV+2*m+1}")
    for m in range(4):
        e(f"v_mov_b32 v{ON+m}, 0x3f803f80")
    e("s_nop 1")
    DKV, DZ = ACQ, ACK
    e(f"v_mfma_f32_32x32x16_bf16 v[{DKV}:{DKV+15}], v[{PK}:{PK+3}], v[{VV}:{VV+3}], 0")
    e(f"v_mfma_f32_32x32x16_bf16 v[{DZ}:{DZ+15}], v[{PK}:{PK+3}], v[{ON}:{ON+3}], 0")
    e(f"v_mfma_f32_32x32x16_bf16 v[{DKV}:{DKV+15}], v[{PK+4}:{PK+7}], v[{VV+4}:{VV+7}], v[{DKV}:{DKV+15}]")
    e(f"v_mfma_f32_32x32x16_bf16 v[{DZ}:{DZ+15}], v[{PK+4}:{PK+7}], v[{ON}:{ON+3}], v[{DZ}:{DZ+15}]")
    e("s_mul_i32 s29, s34, 2304")
    e("s_add_u32 s29, s29, 98304")
    e("v_and_b32 v5, 15, v1")
    e("v_lshlrev_b32 v5, 2, v5")
    e("v_lshl_add_u32 v5, v7, 10, v5")
    e("v_lshl_add_u32 v5, v3, 8, v5")
    e("v_add_u32 v5, s29, v5")
    e("v_cmp_ne_u32 vcc, 0, v7")
    e("s_nop 7")
    e("s_nop 7")
    for m in range(8):
        e(f"v_cndmask_b32 v{T+m}, v{DKV+m}, v{DKV+8+m}, vcc")
    for m in range(8):
        e(f"ds_write_b32 v5, v{T+m} offset:{(m&3)*64 + (m>>2)*512}")
    e("v_lshlrev_b32 v6, 4, v3")
    e("v_add_u32 v6, s29, v6")
    e("v_add_u32 v6, 2048, v6")
    e("s_mov_b32 s40, 1")
    e("s_mov_b32 s41, 1")
    e("s_mov_b64 exec, s[40:41]")
    for r in range(16):
        e(f"ds_write_b32 v6, v{DZ+r} offset:{(r&3)*4 + (r>>2)*32}")
    e("s_mov_b64 exec, -1")
    e("s_waitcnt lgkmcnt(0)")
    e("s_barrier")
    e("s_branch K1_SUM")
    out.append("K1_KP1:")
    for i in range(8):
        e(f"ds_write_b128 v14, v[{ACK+4*i}:{ACK+4*i+3}] offset:{1024*i}")
    e("s_waitcnt lgkmcnt(0)")
    e("s_barrier")
    for i in range(4):
        e(f"ds_read_b128 v[{A+4*i}:{A+4*i+3}], v15 offset:{1024*i}")
    e("s_waitcnt lgkmcnt(0)")
    for i in range(16):
        e(f"v_add_f32 v{ACQ+i}, v{ACQ+i}, v{A+i}")
    phi_ops([ACQ + i for i in range(16)], T)
    e("s_lshl_b32 s27, s25, 2")
    e("s_add_u32 s27, s27, s34")
    e("s_lshl_b32 s27, s27, 15")
    e("s_lshl_b32 s29, s26, 11")
    e("s_add_u32 s27, s27, s29")
    e("v_lshlrev_b32 v9, 4, v1")
    e("v_add_u32 v9, s27, v9")
    for q in range(8):
        e(f"v_cvt_pk_bf16_f32 v{T+q}, v{ACQ+2*q}, v{ACQ+2*q+1}")
    for t in range(2):
        e(f"buffer_store_dwordx4 v[{T+4*t}:{T+4*t+3}], v9, s[20:23], 0 offen offset:{WS_PQ + 1024*t}")
    e("s_barrier")
    out.append("K1_SUM:")
    e("v_lshlrev_b32 v5, 2, v0")
    e("v_add_u32 v5, 98304, v5")
    for w in range(4):
        e(f"ds_read_b32 v{T+16+w}, v5 offset:{w*2304}")
    e("v_cmp_gt_u32 vcc, 32, v0")
    e("s_and_saveexec_b64 s[40:41], vcc")
    for w in range(4):
        e(f"ds_read_b32 v{T+20+w}, v5 offset:{w*2304+2048}")
    e("s_mov_b64 exec, s[40:41]")
    e("s_lshl_b32 s29, s25, 5")
    e("s_lshl_b32 s30, s26, 1")
    e("s_add_u32 s29, s29, s30")
    e("s_mul_i32 s29, s29, 1088")
    e(f"s_add_u32 s29, s29, 0x{WS_PART:x}")
    e("v_lshrrev_b32 v6, 8, v0")
    e("v_lshlrev_b32 v6, 6, v6")
    e("v_lshl_add_u32 v6, v0, 2, v6")
    e("v_add_u32 v6, s29, v6")
    e("s_waitcnt lgkmcnt(0)")
    e(f"v_add_f32 v{T+16}, v{T+16}, v{T+17}")
    e(f"v_add_f32 v{T+18}, v{T+18}, v{T+19}")
    e(f"v_add_f32 v{T+16}, v{T+16}, v{T+18}")
    e(f"buffer_store_dword v{T+16}, v6, s[20:23], 0 offen")
    stamp(0, 5)
    e("v_cmp_gt_u32 vcc, 32, v0")
    e("s_and_saveexec_b64 s[40:41], vcc")
    e("s_cbranch_execz K1_END")
    e(f"v_add_f32 v{T+20}, v{T+20}, v{T+21}")
    e(f"v_add_f32 v{T+22}, v{T+22}, v{T+23}")
    e(f"v_add_f32 v{T+20}, v{T+20}, v{T+22}")
    e("v_lshrrev_b32 v6, 4, v0")
    e("v_mul_u32_u24 v6, 1088, v6")
    e("v_and_b32 v7, 15, v0")
    e("v_lshl_add_u32 v6, v7, 2, v6")
    e("v_add_u32 v6, s29, v6")
    e(f"buffer_store_dword v{T+20}, v6, s[20:23], 0 offen offset:1024")
    out.append("K1_END:")
    e("s_endpgm")
    return name


def kr():
    global SV
    SV = [60, 61]
    name = "kr_reduce_kernel"
    kernel_begin(name)
    e("s_cmp_ge_u32 s2, 32")
    e("s_cbranch_scc1 KR_END")
    e("s_load_dwordx2 s[8:9], s[0:1], 72")
    e("v_lshrrev_b32 v4, 6, v0")
    e("s_nop 0")
    e("v_readfirstlane_b32 s24, v4")
    e("s_waitcnt lgkmcnt(0)")
    srd(20, 8, WS_END)
    stamp_init()
    stamp(1, 0)
    e("s_mul_i32 s25, s2, 1088")
    e(f"s_add_u32 s25, s25, 0x{WS_PART:x}")
    e("v_lshlrev_b32 v1, 2, v0")
    e("v_add_u32 v1, s25, v1")
    for rb in range(16):
        e(f"s_mov_b32 s26, {rb*32*1088}")
        e(f"buffer_load_dword v{16+rb}, v1, s[20:23], s26 offen")
    e("v_cmp_gt_u32 vcc, 16, v0")
    e("s_and_saveexec_b64 s[40:41], vcc")
    for rb in range(16):
        e(f"s_mov_b32 s26, {rb*32*1088}")
        e(f"buffer_load_dword v{32+rb}, v1, s[20:23], s26 offen offset:1024")
    e("s_mov_b64 exec, s[40:41]")
    e("s_waitcnt vmcnt(0)")
    for st in (1, 2, 4, 8):
        for i in range(0, 16, 2 * st):
            e(f"v_add_f32 v{16+i}, v{16+i}, v{16+i+st}")
    e("v_cvt_pk_bf16_f32 v16, v16, v16")
    e("v_and_b32 v2, 15, v0")
    e("v_lshrrev_b32 v3, 4, v0")
    e("v_lshlrev_b32 v2, 4, v2")
    e("v_bfe_u32 v4, v3, 2, 1")
    e("v_lshl_add_u32 v2, v4, 9, v2")
    e("v_and_b32 v4, 3, v3")
    e("v_lshl_add_u32 v2, v4, 1, v2")
    e("v_lshrrev_b32 v4, 3, v3")
    e("v_lshl_add_u32 v2, v4, 3, v2")
    e("s_lshl_b32 s26, s2, 10")
    e(f"s_add_u32 s26, s26, 0x{WS_KVZ:x}")
    e("v_add_u32 v2, s26, v2")
    e("buffer_store_short v16, v2, s[20:23], 0 offen")
    stamp(1, 1)
    e("v_cmp_gt_u32 vcc, 16, v0")
    e("s_and_saveexec_b64 s[40:41], vcc")
    e("s_cbranch_execz KR_END")
    for st in (1, 2, 4, 8):
        for i in range(0, 16, 2 * st):
            e(f"v_add_f32 v{32+i}, v{32+i}, v{32+i+st}")
    e("v_cvt_pk_bf16_f32 v32, v32, v32")
    e("v_bfe_u32 v4, v0, 2, 1")
    e("v_lshlrev_b32 v2, 9, v4")
    e("v_and_b32 v4, 3, v0")
    e("v_lshl_add_u32 v2, v4, 1, v2")
    e("v_lshrrev_b32 v4, 3, v0")
    e("v_lshl_add_u32 v2, v4, 3, v2")
    e("v_add_u32 v2, s26, v2")
    e(f"buffer_store_short v32, v2, s[20:23], 0 offen offset:{16*16}")
    e(f"buffer_store_short v32, v2, s[20:23], 0 offen offset:{20*16}")
    out.append("KR_END:")
    e("s_endpgm")
    return name


_lab = [0]


def pair_halves(ACC, T, XL):
    _lab[0] += 1
    L = _lab[0]
    e("s_barrier")
    e("s_lshl_b32 s28, s24, 11")
    e(f"s_add_u32 s28, s28, {XL}")
    e("v_lshlrev_b32 v14, 4, v1")
    e("v_add_u32 v14, s28, v14")
    e("s_xor_b32 s28, s28, 0x2000")
    e("v_lshlrev_b32 v15, 4, v1")
    e("v_add_u32 v15, s28, v15")
    e("s_cmp_eq_u32 s35, 0")
    e(f"s_cbranch_scc0 PH1_{L}")
    e(f"ds_write_b128 v14, v[{ACC+8}:{ACC+11}]")
    e(f"ds_write_b128 v14, v[{ACC+12}:{ACC+15}] offset:1024")
    for i in range(8):
        e(f"v_mov_b32 v{T+i}, v{ACC+i}")
    e(f"s_branch PH2_{L}")
    out.append(f"PH1_{L}:")
    e(f"ds_write_b128 v14, v[{ACC}:{ACC+3}]")
    e(f"ds_write_b128 v14, v[{ACC+4}:{ACC+7}] offset:1024")
    for i in range(8):
        e(f"v_mov_b32 v{T+i}, v{ACC+8+i}")
    out.append(f"PH2_{L}:")
    e("s_waitcnt lgkmcnt(0)")
    e("s_barrier")
    e(f"ds_read_b128 v[{ACC}:{ACC+3}], v15")
    e(f"ds_read_b128 v[{ACC+4}:{ACC+7}], v15 offset:1024")
    e("s_waitcnt lgkmcnt(0)")
    for i in range(8):
        e(f"v_add_f32 v{T+i}, v{T+i}, v{ACC+i}")


def k2():
    global SV
    SV = [174, 175]
    name = "k2_attnout_kernel"
    kernel_begin(name)
    cx = Ctx()
    e("s_cmp_ge_u32 s2, 256")
    e("s_cbranch_scc1 K2_END")
    e("s_load_dwordx2 s[4:5], s[0:1], 0")
    e("s_load_dwordx2 s[6:7], s[0:1], 16")
    e("s_load_dwordx2 s[8:9], s[0:1], 72")
    e("s_load_dwordx4 s[40:43], s[0:1], 32")
    e("s_load_dwordx2 s[10:11], s[0:1], 48")
    common_ids()
    wg_map()
    e("s_waitcnt lgkmcnt(0)")
    srd(12, 4, S * D * 2)
    srd(16, 6, D * D * 2)
    srd(20, 8, WS_END)
    srd(44, 40, D * F * 2)
    srd(48, 42, D * F * 2)
    srd(52, 10, D * F * 2)
    stamp_init()
    stamp(2, 0)
    A = 16
    DS = [80, 96, 112]
    ACC = 128
    XR = 144
    T = 152
    KV = 0
    BFB = 16
    e("v_lshrrev_b32 v10, 2, v1")
    e("s_lshl_b32 s28, s24, 6")
    e("v_add_u32 v10, s28, v10")
    e("v_lshlrev_b32 v10, 10, v10")
    e("v_and_b32 v11, 3, v1")
    e("v_lshl_add_u32 v10, v11, 4, v10")
    e("s_lshl_b32 s29, s26, 6")
    e("v_add_u32 v10, s29, v10")
    e("s_lshl_b32 s30, s24, 12")
    e("s_lshl_b32 s27, s25, 2")
    e("s_add_u32 s27, s27, s34")
    e("s_lshl_b32 s28, s27, 15")
    e("v_lshlrev_b32 v8, 4, v1")
    e("v_add_u32 v8, s28, v8")
    e("s_lshl_b32 s28, s35, 10")
    e("v_add_u32 v9, s28, v8")
    e("v_lshlrev_b32 v11, 4, v1")
    e("s_lshl_b32 s28, s24, 12")
    e(f"s_add_u32 s28, s28, 0x{WS_KVZ:x}")
    e("v_add_u32 v11, s28, v11")
    for ii in range(4):
        e(f"s_add_u32 m0, s30, {32768}")
        e("s_nop 0")
        cx.emit(("V", f"buffer_load_dwordx4 v11, s[20:23], 0 offen offset:{ii*1024} lds", "B"))
    for i in range(16):
        if i % 2 == 0 and i:
            e("v_add_u32 v9, 0x1000, v9")
        cx.emit(("V", f"buffer_load_dwordx4 v[{A+4*i}:{A+4*i+3}], v9, s[20:23], 0 offen offset:{WS_PQ + (i%2)*2048}", ("h", i)))
        if i == 1:
            for ii in range(4):
                e(f"s_mov_b32 s31, {ii*16384}")
                e(f"s_add_u32 m0, s30, {ii*1024}")
                e("s_nop 0")
                cx.emit(("V", "buffer_load_dwordx4 v10, s[16:19], s31 offen lds", "B"))
    e("s_lshl_b32 s28, s27, 5")
    e("v_add_u32 v4, s28, v2")
    e("v_lshlrev_b32 v4, 10, v4")
    e("v_lshl_add_u32 v4, v3, 3, v4")
    e("s_lshl_b32 s29, s26, 6")
    e("s_lshl_b32 s28, s35, 5")
    e("s_add_u32 s29, s29, s28")
    e("v_add_u32 v4, s29, v4")
    for q in range(2):
        cx.emit(("V", f"buffer_load_dwordx2 v[{XR+2*q}:{XR+2*q+1}], v4, s[12:15], 0 offen offset:{16*q}", "X"))
    tr_parts()
    e("v_lshl_add_u32 v12, v3, 2, v5")
    e("v_lshlrev_b32 v12, 6, v12")
    e("v_lshl_add_u32 v12, v7, 5, v12")
    e("v_lshl_add_u32 v12, v6, 3, v12")
    e("s_lshl_b32 s28, s35, 10")
    e("v_add_u32 v12, s28, v12")

    e("v_lshlrev_b32 v13, 4, v1")
    e("s_lshl_b32 s28, s35, 10")
    e("s_add_u32 s28, s28, 32768")
    e("v_add_u32 v13, s28, v13")

    def kvread(i):
        return [("L", f"ds_read_b128 a[{KV+4*(i%4)}:{KV+4*(i%4)+3}], v13 offset:{i*2048}", ("k", i))]

    def omfma(i):
        d = DS[i % 3]
        cx.vm.wait({("h", i)})
        cx.lg.wait({("k", i)})
        e(f"v_mfma_f32_32x32x16_bf16 v[{d}:{d+15}], a[{KV+4*(i%4)}:{KV+4*(i%4)+3}], v[{A+4*i}:{A+4*i+3}], 0")

    def oproc(i):
        d = DS[i % 3]
        ops = [f"v_add_f32 v{T}, 0x358637bd, v{d+8}", f"v_rcp_f32 v{T}, v{T}", "s_nop 0"]
        for m in range(8):
            ops.append(f"v_mul_f32 v{d+m}, v{d+m}, v{T}")
        for m in range(4):
            ops.append(f"v_cvt_pk_bf16_f32 v{A+4*i+m}, v{d+2*m}, v{d+2*m+1}")
        return ops

    LA, NBUF = 2, 3

    def reads(i):
        b = BFB + 4 * (i % NBUF)
        return [("L", f"ds_read_b64_tr_b16 a[{b}:{b+1}], v12 offset:{i*2048}", ("b", i)),
                ("L", f"ds_read_b64_tr_b16 a[{b+2}:{b+3}], v12 offset:{i*2048+512}", ("b", i))]

    stamp(2, 1)
    cx.vm.wait({"B"})
    e("s_barrier")
    stamp(2, 2)
    for i in range(4):
        cx.emits(kvread(i))
    for i in range(LA):
        cx.emits(reads(i))
    omfma(0)
    omfma(1)
    e("s_nop 7")
    e("s_nop 3")
    for op in oproc(0):
        e(op)
    for i in range(16):
        b = BFB + 4 * (i % NBUF)
        if i + 2 < 16:
            omfma(i + 2)
        if i + 4 < 16:
            cx.emits(kvread(i + 4))
        if i + LA < 16:
            cx.emits(reads(i + LA))
        if i + 1 < 16:
            ops = oproc(i + 1)
            for op in ops[:8]:
                e(op)
        cx.lg.wait({("b", i)})
        cc = "0" if i == 0 else f"v[{ACC}:{ACC+15}]"
        e(f"v_mfma_f32_32x32x16_bf16 v[{ACC}:{ACC+15}], a[{b}:{b+3}], v[{A+4*i}:{A+4*i+3}], {cc}")
        if i + 1 < 16:
            for op in ops[8:]:
                e(op)
    e("s_nop 7")
    e("s_nop 7")
    stamp(2, 3)
    pair_halves(ACC, T, 0)
    cx.vm.wait({"X"})
    for i in range(4):
        x = XR + i
        e(f"v_lshlrev_b32 v{T+8}, 16, v{x}")
        e(f"v_and_b32 v{T+9}, 0xffff0000, v{x}")
        e(f"v_add_f32 v{T+8}, v{T+8}, v{T+2*i}")
        e(f"v_add_f32 v{T+9}, v{T+9}, v{T+2*i+1}")
        e(f"v_cvt_pk_bf16_f32 v{x}, v{T+8}, v{T+9}")
    e("s_lshl_b32 s29, s26, 11")
    e("s_lshl_b32 s28, s35, 10")
    e("s_add_u32 s29, s29, s28")
    e(f"s_add_u32 s29, s29, 0x{WS_H:x}")
    e("v_add_u32 v8, s29, v8")
    e(f"buffer_store_dwordx4 v[{XR}:{XR+3}], v8, s[20:23], 0 offen")
    stamp(2, 4)
    out.append("K2_END:")
    e("s_endpgm")
    return name


def k3():
    global SV
    SV = [206, 207]
    name = "k3_gateup_kernel"
    kernel_begin(name)
    cx = Ctx()
    e("s_cmp_ge_u32 s2, 240")
    e("s_cbranch_scc1 K3_END")
    e("s_load_dwordx2 s[4:5], s[0:1], 32")
    e("s_load_dwordx2 s[6:7], s[0:1], 40")
    e("s_load_dwordx2 s[8:9], s[0:1], 72")
    e("s_load_dwordx2 s[10:11], s[0:1], 48")
    common_ids()
    wg_map()
    e("s_waitcnt lgkmcnt(0)")
    srd(12, 4, D * F * 2)
    srd(16, 6, D * F * 2)
    srd(20, 8, WS_END)
    srd(44, 10, D * F * 2)
    stamp_init()
    stamp(3, 0)
    A = 16
    ACC = 80
    T = 176
    DV = 200
    R = 6
    SLOT = 24576
    XS = R * SLOT
    e("s_lshl_b32 s27, s25, 2")
    e("s_add_u32 s27, s27, s34")
    e("s_lshl_b32 s28, s27, 15")
    e("s_lshl_b32 s29, s35, 10")
    e("s_add_u32 s28, s28, s29")
    e(f"s_add_u32 s28, s28, 0x{WS_H:x}")
    e("v_lshlrev_b32 v9, 4, v1")
    e("v_add_u32 v9, s28, v9")
    for n in range(16):
        if n % 2 == 0 and n:
            e("v_add_u32 v9, 0x1000, v9")
        cx.emit(("V", f"buffer_load_dwordx4 v[{A+4*n}:{A+4*n+3}], v9, s[20:23], 0 offen offset:{(n%2)*2048}", "A"))
    e("s_movk_i32 s29, 2752")
    e("s_mov_b32 s28, 43691")
    e("s_mul_i32 s32, s26, 192")
    e("s_lshl_b32 s33, s34, 4")
    for i in range(3):
        d = DV + i
        e(f"v_add_u32 v14, {64*i}, v1")
        e("v_mul_lo_u32 v15, v14, s28")
        e("v_lshrrev_b32 v15, 19, v15")
        e("v_mul_u32_u24 v8, 12, v15")
        e("v_sub_u32 v14, v14, v8")
        e("v_add_u32 v15, s33, v15")
        e(f"v_mul_lo_u32 v{d}, v15, s29")
        e(f"v_lshl_add_u32 v{d}, v14, 4, v{d}")
        e(f"v_add_u32 v{d}, s32, v{d}")
    e("s_mul_i32 s30, s34, 3072")
    e("s_mul_i32 s28, s35, 12288")
    e("s_add_u32 s30, s30, s28")
    e("s_cmp_eq_u32 s35, 0")
    e("s_cselect_b32 s36, s12, s16")
    e("s_cselect_b32 s37, s13, s17")
    e("s_mov_b32 s38, s14")
    e("s_mov_b32 s39, 0x00020000")

    def dma_ops(st):
        ops = []
        for i in range(3):
            ops.append(f"s_mov_b32 s31, {st*64*2752}")
            ops.append(f"s_add_u32 m0, s30, {(st % R)*SLOT + i*1024}")
            ops.append("s_nop 0")
            ops.append(("V", f"buffer_load_dwordx4 v{DV+i}, s[36:39], s31 offen lds", ("B", st)))
        return ops

    tr_parts()
    e("v_lshl_add_u32 v12, v3, 2, v5")
    e("v_mul_u32_u24 v12, 192, v12")
    e("v_lshl_add_u32 v12, v7, 5, v12")
    e("v_lshl_add_u32 v12, v6, 3, v12")
    e("s_mul_i32 s28, s35, 3072")
    e("v_add_u32 v12, s28, v12")
    e("v_add_u32 v13, 0xc000, v12")
    e("v_add_u32 v11, 0x18000, v12")
    for st in range(2):
        cx.emits(dma_ops(st))
    stamp(3, 1)
    cx.vm.wait({"A"})
    stamp(3, 2)
    RS, NB = 14, 15
    s0, s1, q0, q1, ones = T, T + 1, T + 2, T + 3, T + 4
    e(f"v_mov_b32 v{ones}, 0x3f803f80")
    for r in (s0, s1, q0, q1):
        e(f"v_mov_b32 v{r}, 0")
    main = []
    for i in range(64):
        main.append(f"v_dot2c_f32_bf16 v{s0 if i % 2 == 0 else s1}, v{A+i}, v{ones}")
        main.append(f"v_dot2c_f32_bf16 v{q0 if i % 2 == 0 else q1}, v{A+i}, v{A+i}")
    cx.spread(main, [])
    e("s_nop 3")
    e(f"v_add_f32 v{s0}, v{s0}, v{s1}")
    e(f"v_add_f32 v{q0}, v{q0}, v{q1}")
    e(f"v_mov_b32 v{s1}, v{s0}")
    e(f"v_mov_b32 v{q1}, v{q0}")
    e("s_nop 1")
    e(f"v_permlane32_swap_b32 v{s0}, v{s1}")
    e(f"v_permlane32_swap_b32 v{q0}, v{q1}")
    e("s_nop 1")
    e(f"v_add_f32 v{s0}, v{s0}, v{s1}")
    e(f"v_add_f32 v{s1}, v{q0}, v{q1}")
    e("s_lshl_b32 s28, s24, 8")
    e(f"s_add_u32 s28, s28, {XS}")
    e("v_lshlrev_b32 v8, 3, v2")
    e("v_add_u32 v9, s28, v8")
    e("s_xor_b32 s28, s28, 0x400")
    e("v_add_u32 v8, s28, v8")
    e(f"ds_write_b64 v9, v[{s0}:{s1}]")
    e("s_waitcnt lgkmcnt(0)")
    e("s_barrier")
    e(f"ds_read_b64 v[{q0}:{q1}], v8")
    e("s_waitcnt lgkmcnt(0)")
    e(f"v_add_f32 v{s0}, v{s0}, v{q0}")
    e(f"v_add_f32 v{q0}, v{s1}, v{q1}")
    finish_stats(s0, q0, RS, NB, 1)
    for r in range(4):
        cx.emits(ln_apply_ops(A + r, RS, NB, T))

    def reads(n):
        st, t2 = n // 2, n % 2
        sl = st % R
        va = [12, 13, 11][sl // 2]
        base = (sl % 2) * SLOT + t2 * 32 * 192
        b = 24 * (n % 2)
        ops = []
        for p in range(2):
            for u in range(3):
                o = base + p * 12288 + u * 64
                k = (p * 3 + u) * 4
                ops.append(("L", f"ds_read_b64_tr_b16 a[{b+k}:{b+k+1}], v{va} offset:{o}", ("b", n)))
                ops.append(("L", f"ds_read_b64_tr_b16 a[{b+k+2}:{b+k+3}], v{va} offset:{o+8*192}", ("b", n)))
        return ops

    def pre(n):
        if n % 2 == 0:
            cx.vm.wait({("B", n // 2)})
            e("s_barrier")

    stamp(3, 3)
    pre(0)
    cx.emits(reads(0))
    for n in range(16):
        cx.lg.wait({("b", n)})
        fill = []
        if n + 1 < 16:
            pre(n + 1)
            fill += reads(n + 1)
        b = 24 * (n % 2)
        a = f"v[{A+4*n}:{A+4*n+3}]"
        main = []
        for x in range(6):
            cc = "0" if n == 0 else f"v[{ACC+16*x}:{ACC+16*x+15}]"
            main.append(f"v_mfma_f32_32x32x16_bf16 v[{ACC+16*x}:{ACC+16*x+15}], a[{b+4*x}:{b+4*x+3}], {a}, {cc}")
        f2 = []
        if n + 1 < 16:
            f2 += ln_apply4(A + 4 * (n + 1), RS, NB, T)
        st = n // 2
        if n == 0:
            f2 += dma_ops(2)
        if n % 2 == 1 and st + 3 < 8:
            f2 += dma_ops(st + 3)
        cx.spread(main, merge(fill, f2))
    e("s_mul_i32 s28, s2, 5888")
    e("v_lshlrev_b32 v9, 4, v0")
    e("v_add_u32 v9, s28, v9")
    e("buffer_load_dwordx4 v[200:203], v9, s[44:47], 0 offen")
    e("s_nop 7")
    e("s_nop 7")
    stamp(3, 4)
    e("s_barrier")
    e("s_lshl_b32 s28, s24, 14")
    e("v_lshlrev_b32 v8, 4, v1")
    e("v_add_u32 v9, s28, v8")
    e("s_xor_b32 s28, s28, 0x10000")
    e("v_add_u32 v8, s28, v8")
    e("s_mul_i32 s28, s27, 88064")
    e("s_mul_i32 s29, s26, 6144")
    e("s_add_u32 s28, s28, s29")
    e(f"s_add_u32 s28, s28, 0x{WS_HH:x}")
    e("v_lshlrev_b32 v10, 4, v1")
    e("v_add_u32 v10, s28, v10")
    G = [ACC, ACC + 16, ACC + 32]
    U = [ACC + 48, ACC + 64, ACC + 80]

    def fin(u):
        for i in range(16):
            e(f"v_mul_f32 v{G[u]+i}, v{G[u]+i}, v{U[u]+i}")
        for q in range(8):
            e(f"v_cvt_pk_bf16_f32 v{U[u]+q}, v{G[u]+2*q}, v{G[u]+2*q+1}")
        e(f"s_movk_i32 s31, {2048*u}")
        for tt in range(2):
            e(f"buffer_store_dwordx4 v[{U[u]+4*tt}:{U[u]+4*tt+3}], v10, s[20:23], s31 offen offset:{1024*tt} sc1")

    e("s_cmp_eq_u32 s35, 0")
    e("s_cbranch_scc0 K3_KP1")
    for i, base in enumerate((G[2], U[2])):
        for q in range(4):
            e(f"ds_write_b128 v9, v[{base+4*q}:{base+4*q+3}] offset:{(4*i+q)*1024}")
    e("s_waitcnt lgkmcnt(0)")
    e("s_barrier")
    for i in range(16):
        e(f"ds_read_b128 v[{A+4*i}:{A+4*i+3}], v8 offset:{i*1024}")
    for i, base in enumerate((G[0], U[0], G[1], U[1])):
        e(f"s_waitcnt lgkmcnt({12-4*i})")
        for q in range(16):
            e(f"v_add_f32 v{base+q}, v{base+q}, v{A+16*i+q}")
    fin(0)
    e("s_cmp_ge_u32 s26, 14")
    e("s_cbranch_scc1 K3_END")
    fin(1)
    stamp(3, 5)
    e("s_branch K3_END")
    out.append("K3_KP1:")
    for i, base in enumerate((G[0], U[0], G[1], U[1])):
        for q in range(4):
            e(f"ds_write_b128 v9, v[{base+4*q}:{base+4*q+3}] offset:{(4*i+q)*1024}")
    e("s_waitcnt lgkmcnt(0)")
    e("s_barrier")
    e("s_cmp_ge_u32 s26, 14")
    e("s_cbranch_scc1 K3_END")
    for i in range(8):
        e(f"ds_read_b128 v[{A+4*i}:{A+4*i+3}], v8 offset:{i*1024}")
    for i, base in enumerate((G[2], U[2])):
        e(f"s_waitcnt lgkmcnt({4-4*i})")
        for q in range(16):
            e(f"v_add_f32 v{base+q}, v{base+q}, v{A+16*i+q}")
    fin(2)
    stamp(3, 5)
    out.append("K3_END:")
    e("s_endpgm")
    return name


def k4():
    global SV
    SV = [62, 63]
    name = NAME + "_kernel"
    kernel_begin(name)
    cx = Ctx()
    e("s_cmp_ge_u32 s2, 256")
    e("s_cbranch_scc1 K4_END")
    e("s_load_dwordx2 s[4:5], s[0:1], 48")
    e("s_load_dwordx2 s[6:7], s[0:1], 56")
    e("s_load_dwordx2 s[8:9], s[0:1], 72")
    common_ids()
    e("s_and_b32 s25, s2, 7")
    e("s_lshl_b32 s25, s25, 2")
    e("s_bfe_u32 s26, s2, 0x20003")
    e("s_or_b32 s25, s25, s26")
    e("s_lshr_b32 s26, s2, 5")
    e("s_and_b32 s32, s24, 1")
    e("s_bfe_u32 s33, s24, 0x10001")
    e("s_waitcnt lgkmcnt(0)")
    srd(12, 4, F * D * 2)
    srd(16, 6, S * D * 2)
    srd(20, 8, WS_END)
    stamp_init()
    stamp(4, 0)
    NK = F // 16
    SL = 8
    NST = (NK + SL - 1) // SL
    R = 4
    SLOT = 32768
    ACC = 16
    XR = 32
    T = 40
    LA = 2
    NBUF = 3
    AFR = 0
    BFR = 4 * NBUF
    e("s_lshl_b32 s27, s25, 1")
    e("s_add_u32 s27, s27, s32")
    e("s_lshl_b32 s28, s27, 15")
    e("s_lshl_b32 s29, s26, 12")
    e("s_add_u32 s28, s28, s29")
    e("s_lshl_b32 s29, s33, 11")
    e("s_add_u32 s28, s28, s29")
    e("s_lshl_b32 s29, s35, 10")
    e("s_add_u32 s28, s28, s29")
    e(f"s_add_u32 s28, s28, 0x{WS_H:x}")
    e("v_lshlrev_b32 v14, 4, v1")
    e("v_add_u32 v14, s28, v14")
    cx.emit(("V", f"buffer_load_dwordx4 v[{XR}:{XR+3}], v14, s[20:23], 0 offen", "R"))
    e("s_mul_i32 s28, s27, 88064")
    e("s_lshr_b32 s29, s24, 1")
    e("s_lshl_b32 s29, s29, 11")
    e("s_add_u32 s28, s28, s29")
    e(f"s_add_u32 s28, s28, 0x{WS_HH:x}")
    e("v_lshlrev_b32 v15, 4, v1")
    e("v_add_u32 v15, s28, v15")
    e("s_lshl_b32 s36, s32, 13")
    e("s_add_u32 s36, s36, s29")
    e("v_lshrrev_b32 v10, 3, v1")
    e("v_and_b32 v11, 7, v1")
    e("v_bfe_u32 v8, v10, 1, 1")
    e("v_lshlrev_b32 v8, 2, v8")
    e("v_xor_b32 v11, v11, v8")
    e("s_lshl_b32 s28, s24, 4")
    e("v_add_u32 v10, s28, v10")
    e("v_lshlrev_b32 v10, 10, v10")
    e("v_lshl_add_u32 v10, v11, 4, v10")
    e("s_lshl_b32 s29, s26, 7")
    e("v_add_u32 v10, s29, v10")
    e("s_lshl_b32 s30, s24, 11")
    e("s_add_u32 s30, s30, 16384")

    def dma_ops(st):
        ops = []
        sl = (st % R) * SLOT
        for i in range(2):
            ops.append(f"s_mov_b32 s31, {st*SL*1024 + i*1024}")
            ops.append(f"s_add_u32 m0, s36, {sl + i*1024}")
            ops.append("s_nop 0")
            ops.append(("V", "buffer_load_dwordx4 v15, s[20:23], s31 offen lds", ("B", st)))
            ops.append(f"s_mov_b32 s31, {(st*128 + 8*i)*1024}")
            ops.append(f"s_add_u32 m0, s30, {sl + i*1024}")
            ops.append("s_nop 0")
            ops.append(("V", "buffer_load_dwordx4 v10, s[12:15], s31 offen lds", ("B", st)))
        return ops

    for st in range(3):
        cx.emits(dma_ops(st))
    tr_parts()
    e("v_lshl_add_u32 v12, v3, 2, v5")
    e("v_lshlrev_b32 v12, 7, v12")
    e("v_lshrrev_b32 v8, 1, v5")
    e("v_xor_b32 v8, s33, v8")
    e("v_lshl_add_u32 v12, v8, 6, v12")
    e("v_lshl_add_u32 v12, v7, 5, v12")
    e("v_lshl_add_u32 v12, v6, 3, v12")
    e("s_lshl_b32 s28, s35, 11")
    e("s_add_u32 s28, s28, 0x4000")
    e("v_add_u32 v12, s28, v12")
    e("v_add_u32 v13, 0x10000, v12")
    e("s_lshl_b32 s28, s32, 13")
    e("s_lshl_b32 s29, s35, 10")
    e("s_add_u32 s28, s28, s29")
    e("v_lshlrev_b32 v4, 4, v1")
    e("v_add_u32 v4, s28, v4")
    e("v_add_u32 v9, 0x10000, v4")
    stamp(4, 1)
    NL = NK // 2

    def reads(n):
        st, t2 = n // 4, n % 4
        sl = st % R
        hi = sl >= 2
        base = (sl % 2) * SLOT
        af = AFR + 4 * (n % NBUF)
        bf = BFR + 4 * (n % NBUF)
        return [("L", f"ds_read_b128 a[{af}:{af+3}], v{9 if hi else 4} offset:{base + t2*2048}", ("b", n)),
                ("L", f"ds_read_b64_tr_b16 a[{bf}:{bf+1}], v{13 if hi else 12} offset:{base + t2*4096}", ("b", n)),
                ("L", f"ds_read_b64_tr_b16 a[{bf+2}:{bf+3}], v{13 if hi else 12} offset:{base + t2*4096 + 1024}", ("b", n))]

    def pre(n):
        if n % 4 == 0:
            cx.vm.wait({("B", n // 4)})
            e("s_barrier")

    for n in range(LA):
        pre(n)
        cx.emits(reads(n))
    for n in range(NL):
        cx.lg.wait({("b", n)})
        af = AFR + 4 * (n % NBUF)
        bf = BFR + 4 * (n % NBUF)
        cc = "0" if n == 0 else f"v[{ACC}:{ACC+15}]"
        if n + LA < NL:
            pre(n + LA)
        e(f"v_mfma_f32_32x32x16_bf16 v[{ACC}:{ACC+15}], a[{bf}:{bf+3}], a[{af}:{af+3}], {cc}")
        if n + LA < NL:
            cx.emits(reads(n + LA))
        st, t2 = n // 4, n % 4
        if t2 >= 2 and st + 3 < NST:
            ops = dma_ops(st + 3)
            cx.emits(ops[(t2 - 2) * 8:(t2 - 2) * 8 + 8])
    e("s_nop 7")
    e("s_nop 7")
    stamp(4, 3)
    pair_halves(ACC, T, 0)
    cx.vm.wait({"R"})
    for i in range(4):
        x = XR + i
        e(f"v_lshlrev_b32 v{T+8}, 16, v{x}")
        e(f"v_and_b32 v{T+9}, 0xffff0000, v{x}")
        e(f"v_add_f32 v{T+8}, v{T+8}, v{T+2*i}")
        e(f"v_add_f32 v{T+9}, v{T+9}, v{T+2*i+1}")
        e(f"v_cvt_pk_bf16_f32 v{x}, v{T+8}, v{T+9}")
    e("s_lshl_b32 s28, s27, 5")
    e("v_add_u32 v8, s28, v2")
    e("v_lshlrev_b32 v9, 10, v8")
    e("v_lshl_add_u32 v9, v3, 3, v9")
    e("s_lshl_b32 s29, s26, 7")
    e("s_lshl_b32 s28, s33, 6")
    e("s_add_u32 s29, s29, s28")
    e("s_lshl_b32 s28, s35, 5")
    e("s_add_u32 s29, s29, s28")
    e("v_add_u32 v9, s29, v9")
    for q in range(2):
        e(f"buffer_store_dwordx2 v[{XR+2*q}:{XR+2*q+1}], v9, s[16:19], 0 offen offset:{16*q}")
    stamp(4, 4)
    out.append("K4_END:")
    e("s_endpgm")
    return name


def main():
    hdr = open("cdna_kernels/%s.s.ref" % NAME).read().splitlines()
    for l in hdr:
        if "@launch" in l and "grid=(4096" in l:
            break
        out.append(l.replace("@launch", "launch"))
    out.append("; @launch kernel=k1_qkv_kernel grid=(256,1,1) block=(512,1,1) lds=133120")
    out.append("; @launch kernel=kr_reduce_kernel grid=(32,1,1) block=(256,1,1) lds=0")
    out.append("; @launch kernel=k2_attnout_kernel grid=(256,1,1) block=(512,1,1) lds=65536")
    out.append("; @launch kernel=k3_gateup_kernel grid=(240,1,1) block=(512,1,1) lds=149504")
    out.append(f"; @launch kernel={NAME}_kernel grid=(256,1,1) block=(512,1,1) lds=131072")
    out.append('.amdgcn_target "amdgcn-amd-amdhsa--gfx950"')
    out.append(".text")
    n1 = k1()
    nr = kr()
    n2 = k2()
    n3 = k3()
    n4 = k4()
    out.append('.section .rodata,"a"')
    kdesc(n1, 216, 176)
    kdesc(nr, 64, 64)
    kdesc(n2, 208, 176)
    kdesc(n3, 256, 208)
    kdesc(n4, 96, 64)
    path = sys.argv[1] if len(sys.argv) > 1 else "cdna_kernels/%s.s" % NAME
    open(path, "w").write("\n".join(out) + "\n")


main()
```
